```python
import torch

def _softmax(x, axis=-1):
    return torch.softmax(x, dim=axis)

def _gelu(x):
    return torch.nn.functional.gelu(x, approximate='tanh')

def _silu(x):
    return torch.nn.functional.silu(x)

def _sigmoid(x):
    return torch.sigmoid(x)

def _layernorm(x, axis=-1, eps=1e-05):
    m = x.mean(dim=axis, keepdim=True)
    v = x.var(dim=axis, keepdim=True, unbiased=False)
    return (x - m) / torch.sqrt(v + eps)

def _scatter_add(tgt, idx, src, axis=0):
    return tgt.clone().index_add_(axis, idx, src)

def _segment_sum(src, seg, n):
    out = torch.zeros((n,) + src.shape[1:], dtype=src.dtype)
    return out.index_add_(0, seg, src)

def _pad(x, pw):
    flat = tuple((v for pair in reversed(pw) for v in pair))
    return torch.nn.functional.pad(x, flat)
kernel_name = 'adaLN_cond__ssm_conv_h3__glu_gated_swiglu__prompt'

def setup_inputs():

    _w = lambda a: (lambda t: t.to(torch.bfloat16) if t.is_floating_point() else t)(torch.as_tensor(a))

    def _A_setup():
        B, S, D = (1, 2048, 576)
        ks = 4
        return {'q': _w((lambda *s: torch.randn(*s, dtype=torch.bfloat16) * 0.05)(B, S, D)), 'k': _w((lambda *s: torch.randn(*s, dtype=torch.bfloat16) * 0.8)(B, S, D)), 'v': _w((lambda *s: torch.randn(*s, dtype=torch.bfloat16) * 0.8)(B, S, D)), 'shift_k': _w((lambda *s: torch.randn(*s, dtype=torch.bfloat16) * 0.8)(D, ks) * 0.5), 'ssm_k': _w((lambda *s: torch.randn(*s, dtype=torch.bfloat16) * 0.8)(D, S) * (1.0 / S ** 0.5)), 'ssm_D': _w((lambda *s: torch.randn(*s, dtype=torch.bfloat16) * 0.8)(D))}
    _A_in = _A_setup()

    def _B_setup():
        B, S, D, F = (1, 2048, 576, 4608)
        return {'x': _w((lambda *s: torch.randn(*s, dtype=torch.bfloat16) * 0.05)(B, S, D)), 'w1': _w((lambda *s: torch.randn(*s, dtype=torch.bfloat16) * 0.8)(D, F) * (2.0 / D) ** 0.5), 'w3': _w((lambda *s: torch.randn(*s, dtype=torch.bfloat16) * 0.8)(D, F) * (2.0 / D) ** 0.5), 'w2': _w((lambda *s: torch.randn(*s, dtype=torch.bfloat16) * 0.8)(F, D) * (2.0 / F) ** 0.5)}
    _B_in = _B_setup()
    return {'A_q': _A_in['q'], 'A_k': _A_in['k'], 'A_v': _A_in['v'], 'A_shift_k': _A_in['shift_k'], 'A_ssm_k': _A_in['ssm_k'], 'A_ssm_D': _A_in['ssm_D'], 'B_x': _B_in['x'], 'B_w1': _B_in['w1'], 'B_w3': _B_in['w3'], 'B_w2': _B_in['w2'], 'c': _w((lambda *s: torch.randn(*s, dtype=torch.bfloat16) * 0.2)(1, 576) * 8.0), 'w_mod': _w((lambda *s: torch.randn(*s, dtype=torch.bfloat16) * 0.2)(576, 6 * 576) * 576 ** (-0.5) * 8.0)}

def reference(A_q, A_k, A_v, A_shift_k, A_ssm_k, A_ssm_D, B_x, B_w1, B_w3, B_w2, c, w_mod):

    def _A_ref(q, k, v, shift_k, ssm_k, ssm_D):
        B, S, D = q.shape
        ks = shift_k.shape[-1]
        k_pad = _pad(k, ((0, 0), (ks - 1, 0), (0, 0)))
        k_shift = torch.zeros_like(k)
        for t in range(ks):
            k_shift = k_shift + k_pad[:, t:t + S, :] * shift_k[:, ks - 1 - t][None, None, :]
        kv = k_shift * v
        L = 2 * S
        kv_pad = _pad(kv, ((0, 0), (0, S), (0, 0)))
        kf_pad = _pad(ssm_k, ((0, 0), (0, S)))
        kv_f = (lambda x, axes=(-2, -1): torch.fft.rfft2(x.float(), dim=axes))(kv_pad[:, None, :, :], axes=(1, 2))
        kf_f = (lambda x, axes=(-2, -1): torch.fft.rfft2(x.float(), dim=axes))(kf_pad[:, None, :], axes=(1, 2))
        kf_f = (lambda x, *d: x.permute(*d))(kf_f, 1, 2, 0)
        y_f = kv_f * kf_f[None, :, :, :]
        y = (lambda x, s, axes=(-2, -1): torch.fft.irfft2(x, s=s, dim=axes).to(torch.bfloat16))(y_f, (1, L), axes=(1, 2))[:, 0, :S, :]
        y = y + kv * ssm_D[None, None, :]
        return q * y

    def _B_ref(x, w1, w3, w2):
        gate = torch.einsum('bsd,df->bsf', x, w1)
        up = torch.einsum('bsd,df->bsf', x, w3)
        h = _silu(gate) * up
        out = torch.einsum('bsf,fd->bsd', h, w2)
        return out
    x = A_q
    mod = (_silu(c) @ w_mod).reshape(c.shape[0], 6, 1, -1)
    sa, ca, ga, sb, cb, gb = (mod[:, 0].clone(), mod[:, 1].clone(), mod[:, 2].clone(), mod[:, 3].clone(), mod[:, 4].clone(), mod[:, 5].clone())
    h = _layernorm(x, axis=-1) * (1 + ca) + sa
    x = x + ga * _A_ref(h, A_k, A_v, A_shift_k, A_ssm_k, A_ssm_D)
    h = _layernorm(x, axis=-1) * (1 + cb) + sb
    x = x + gb * _B_ref(h, B_w1, B_w3, B_w2)
    return x
```

```python
S, D, F = 2048, 576, 4608
TD_BYTES = S * D * 2

KA = dict(q=0, k=8, v=16, shift_k=24, ssm_k=32, ssm_D=40, w1=56, w3=64, w2=72, c=80, w_mod=88,
          out=96, dbg=104, ws=112)

WS_MOD = 0
WS_UT = 0x10000
WS_ZT = WS_UT + TD_BYTES
WS_X1 = WS_ZT + TD_BYTES
WS_H2F = WS_X1 + TD_BYTES
WS_PART = WS_H2F + TD_BYTES
PART_BYTES = 8 * TD_BYTES
WS_END = WS_PART + PART_BYTES

LOG2E = 1.4426950408889634


def f32hex(x):
    import struct
    return "0x%08x" % struct.unpack("<I", struct.pack("<f", x))[0]


class Asm:
    def __init__(self):
        self.lines = []

    def __call__(self, s=""):
        for l in s.split("\n"):
            self.lines.append(l)

    def extend(self, items):
        for i in items:
            self(i)

    def text(self):
        return "\n".join(self.lines) + "\n"


def vr(b, n=1):
    return f"v{b}" if n == 1 else f"v[{b}:{b+n-1}]"


def ar(b, n=1):
    return f"a{b}" if n == 1 else f"a[{b}:{b+n-1}]"


def sr(b, n=1):
    return f"s{b}" if n == 1 else f"s[{b}:{b+n-1}]"


def kernel_begin(a, name):
    a(".text")
    a(f".globl {name}")
    a(".p2align 8")
    a(f".type {name},@function")
    a(f"{name}:")


def kernel_desc(a, name, vgpr, accum=None, sgpr=96):
    if accum is None:
        accum = (vgpr + 3) // 4 * 4
    a('.section .rodata,"a"')
    a(".p2align 6")
    a(f".amdhsa_kernel {name}")
    a(f"  .amdhsa_next_free_vgpr {vgpr}")
    a(f"  .amdhsa_next_free_sgpr {sgpr}")
    a(f"  .amdhsa_accum_offset {accum}")
    a("  .amdhsa_group_segment_fixed_size 0")
    a("  .amdhsa_kernarg_size 120")
    a("  .amdhsa_user_sgpr_count 2")
    a("  .amdhsa_user_sgpr_kernarg_segment_ptr 1")
    a("  .amdhsa_system_sgpr_workgroup_id_x 1")
    a("  .amdhsa_float_denorm_mode_32 3")
    a(".end_amdhsa_kernel")


def load_ptr(a, sdst, name):
    a(f"s_load_dwordx2 {sr(sdst, 2)}, s[0:1], {KA[name]}")


def make_srd(a, d, base, nbytes, add=0):
    if add >= 0:
        a(f"s_add_u32 s{d}, s{base}, {add}")
        a(f"s_addc_u32 s{d+1}, s{base+1}, 0")
    else:
        a(f"s_sub_u32 s{d}, s{base}, {-add}")
        a(f"s_subb_u32 s{d+1}, s{base+1}, 0")
    a(f"s_and_b32 s{d+1}, s{d+1}, 0xffff")
    a(f"s_mov_b32 s{d+2}, {nbytes}")
    a(f"s_mov_b32 s{d+3}, 0x00020000")


def make_srd_sadd(a, d, base, nbytes, sadd):
    a(f"s_add_u32 s{d}, s{base}, s{sadd}")
    a(f"s_addc_u32 s{d+1}, s{base+1}, 0")
    a(f"s_and_b32 s{d+1}, s{d+1}, 0xffff")
    a(f"s_mov_b32 s{d+2}, {nbytes}")
    a(f"s_mov_b32 s{d+3}, 0x00020000")


def wave_id(a, sdst, vtmp):
    a(f"v_lshrrev_b32 v{vtmp}, 6, v0")
    a("s_nop 0")
    a(f"v_readfirstlane_b32 s{sdst}, v{vtmp}")
    a("s_nop 3")


def unpack_lo(a, dst, src):
    a(f"v_lshlrev_b32 v{dst}, 16, v{src}")


def unpack_hi(a, dst, src):
    a(f"v_and_b32 v{dst}, 0xffff0000, v{src}")


def magic_div(n, d, bits=16):
    m = ((1 << bits) + d - 1) // d
    for x in range(n):
        assert (x * m) >> bits == x // d, (x, m)
    return m
```

```python
from common import *

NAME = "conv_kernel"
N_CONV = 144
GRID = N_CONV
CSTR = 4160
UOFF = 4 * CSTR
WAVE_LDS = UOFF + 4608
LDS = 4 * WAVE_LDS


def gen():
    a = Asm()
    kernel_begin(a, NAME)
    a(f"s_cmp_ge_u32 s2, {GRID}")
    a(f"s_cbranch_scc1 {NAME}_done")
    load_ptr(a, 4, "ssm_k"); load_ptr(a, 6, "ws"); load_ptr(a, 8, "ssm_D")
    wave_id(a, 12, 1)
    a("s_lshl_b32 s13, s2, 2")
    a("s_add_u32 s13, s13, s12")
    a("s_lshl_b32 s14, s13, 12")
    a(f"s_mul_i32 s15, s12, {WAVE_LDS}")
    a("v_and_b32 v1, 63, v0")
    a("v_lshlrev_b32 v2, 4, v1")
    a("s_waitcnt lgkmcnt(0)")
    make_srd_sadd(a, 16, 4, 4096, 14)
    a(f"s_add_u32 s32, s14, {WS_UT}")
    make_srd_sadd(a, 20, 6, 4096, 32)
    a(f"s_add_u32 s32, s14, {WS_ZT}")
    make_srd_sadd(a, 24, 6, 4096, 32)
    a("s_lshl_b32 s33, s13, 1")
    a("s_and_b32 s33, s33, 0xfffffffc")
    a("s_load_dword s34, s[8:9], s33")
    a(f"s_add_u32 m0, s15, {UOFF + 512}")
    a("s_nop 0")
    for i in range(4):
        a(f"buffer_load_dwordx4 v2, s[20:23], 0 offen offset:{1024*i} lds")
    Dk, Ek, Nk = 16, 32, 48
    for i in range(4):
        a(f"buffer_load_dwordx4 {vr(Dk+4*i, 4)}, v2, s[16:19], 0 offen offset:{1024*i}")
        a(f"buffer_load_dwordx4 {vr(Ek+4*i, 4)}, v2, s[16:19], 0 offen offset:{1024*i+4}")
        a(f"buffer_load_dword v{Nk+i}, v2, s[16:19], 0 offen offset:{1024*i+20}")
    for i in range(4):
        a(f"v_mov_b32 v{56+i}, 0")
    a("v_lshlrev_b32 v3, 3, v1")
    a("v_add_u32 v3, s15, v3")
    a(f"ds_write_b64 v3, v[56:57] offset:{UOFF}")
    a("v_lshrrev_b32 v4, 1, v1")
    a(f"v_mul_u32_u24 v4, {CSTR}, v4")
    a("v_and_b32 v5, 1, v1")
    a("v_lshl_add_u32 v4, v5, 4, v4")
    a("v_add_u32 v4, s15, v4")
    a("v_cmp_gt_u32 vcc, 8, v1")
    a("s_and_saveexec_b64 s[40:41], vcc")
    a("ds_write_b128 v4, v[56:59]")
    a("s_mov_b64 exec, s[40:41]")
    a("v_and_b32 v6, 15, v1")
    a("v_lshrrev_b32 v7, 4, v1")
    a("v_lshrrev_b32 v8, 1, v7")
    a("v_and_b32 v9, 1, v7")
    a("v_add_u32 v10, 1, v6")
    a("v_and_b32 v10, 3, v10")
    a(f"v_mul_u32_u24 v10, {CSTR}, v10")
    a("v_add_u32 v11, 9, v6")
    a("v_and_b32 v11, 0xfffffffc, v11")
    a("v_lshl_add_u32 v11, v8, 4, v11")
    a("v_lshlrev_b32 v12, 3, v9")
    a("v_sub_u32 v11, v11, v12")
    a("v_lshl_add_u32 v10, v11, 1, v10")
    a("v_add_u32 v10, s15, v10")
    a("v_lshlrev_b32 v11, 1, v6")
    a("v_add_u32 v11, v11, v9")
    a("v_lshlrev_b32 v12, 1, v8")
    a("v_sub_u32 v11, v11, v12")
    a("v_add_u32 v11, 4, v11")
    a("v_lshlrev_b32 v11, 4, v11")
    a(f"s_add_u32 s35, s15, {UOFF}")
    a("v_add_u32 v11, s35, v11")
    a("v_lshlrev_b32 v13, 5, v6")
    a("v_lshl_add_u32 v14, v7, 3, v13")
    a("v_lshl_add_u32 v13, v8, 4, v13")
    a("v_xor_b32 v12, 1, v9")
    a("v_lshl_add_u32 v13, v12, 3, v13")
    a(f"s_add_u32 s35, s15, {UOFF + 512}")
    a("v_add_u32 v13, s35, v13")
    a("v_add_u32 v15, s15, v2")
    O = 60
    for i in range(4):
        a(f"s_waitcnt vmcnt({3*(3-i)})")
        d, e, n = Dk + 4*i, Ek + 4*i, Nk + i
        a(f"ds_write_b128 v15, {vr(d, 4)} offset:{32 + 1024*i}")
        a(f"v_alignbit_b32 v{O}, v{d+1}, v{d}, 16")
        a(f"v_alignbit_b32 v{O+1}, v{d+2}, v{d+1}, 16")
        a(f"v_alignbit_b32 v{O+2}, v{d+3}, v{d+2}, 16")
        a(f"v_alignbit_b32 v{O+3}, v{e+3}, v{d+3}, 16")
        a(f"ds_write_b128 v15, {vr(e, 4)} offset:{2*CSTR + 32 + 1024*i}")
        a(f"v_alignbit_b32 v{O+4}, v{e+1}, v{e}, 16")
        a(f"v_alignbit_b32 v{O+5}, v{e+2}, v{e+1}, 16")
        a(f"v_alignbit_b32 v{O+6}, v{e+3}, v{e+2}, 16")
        a(f"v_alignbit_b32 v{O+7}, v{n}, v{e+3}, 16")
        a(f"ds_write_b128 v15, {vr(O, 4)} offset:{CSTR + 32 + 1024*i}")
        a(f"ds_write_b128 v15, {vr(O+4, 4)} offset:{3*CSTR + 32 + 1024*i}")
        O = 68 if O == 60 else 60
    a(f"v_lshlrev_b32 v76, 16, v{Dk}")
    a(f"v_alignbit_b32 v77, v{Dk+1}, v{Dk}, 16")
    a("v_mov_b32 v78, s15")
    a("s_mov_b64 s[40:41], exec")
    a("s_mov_b64 exec, 1")
    a(f"ds_write_b32 v78, v76 offset:{CSTR + 28}")
    a(f"ds_write_b32 v78, v{Dk} offset:{2*CSTR + 28}")
    a(f"ds_write_b64 v78, v[76:77] offset:{3*CSTR + 24}")
    a("s_mov_b64 exec, s[40:41]")
    ACC = 16
    a("s_waitcnt vmcnt(0) lgkmcnt(0)")
    for i in range(32):
        a(f"v_mov_b32 v{ACC+i}, 0")
    a("s_lshl_b32 s36, s34, 16")
    a("s_and_b32 s37, s34, 0xffff0000")
    a("s_bitcmp1_b32 s13, 0")
    a("s_cselect_b32 s36, s37, s36")
    FR = [64, 128]

    def reads(buf, rho):
        out = []
        for b in range(8):
            out.append((b, f"ds_read_b128 {vr(FR[buf]+32+4*b, 4)}, v11 offset:{64*(8*b - rho) + 448}"))
        ra = []
        for aa in range(8):
            ra.append(f"ds_read_b64 {vr(FR[buf]+4*aa, 2)}, v10 offset:{64*(8*aa + rho)}")
            ra.append(f"ds_read_b64 {vr(FR[buf]+4*aa+2, 2)}, v10 offset:{64*(8*aa + rho) + 8}")
        return [x[1] for x in out] + ra

    for r in reads(0, 0):
        a(r)
    a("s_mov_b32 s38, 4")
    a(f"{NAME}_loop:")
    for buf in range(2):
        nxt = reads(1 - buf, buf + 1)
        a("s_waitcnt lgkmcnt(0)")
        k = 0
        seq = [(aa, j) for aa in range(8) for j in range(aa, 8)]
        for i, (aa, j) in enumerate(seq):
            A = vr(FR[buf] + 4*aa, 4)
            B = vr(FR[buf] + 32 + 4*(j - aa), 4)
            c = vr(ACC + 4*j, 4)
            a(f"v_mfma_f32_16x16x32_bf16 {c}, {A}, {B}, {c}")
            if k < len(nxt):
                a(nxt[k]); k += 1
        assert k == len(nxt)
    a("v_add_u32 v10, 128, v10")
    a("v_subrev_u32 v11, 128, v11")
    a("s_sub_u32 s38, s38, 1")
    a("s_cmp_lg_u32 s38, 0")
    a(f"s_cbranch_scc1 {NAME}_loop")
    KV = 64
    a("s_waitcnt lgkmcnt(0)")
    for j in range(8):
        a(f"ds_read_b64 {vr(KV+2*j, 2)}, v13 offset:{512*j}")
    a("s_nop 4")
    for j in range(8):
        a(f"s_waitcnt lgkmcnt({7-j})")
        k0, k1 = KV + 2*j, KV + 2*j + 1
        t = 96 + 4*(j % 2)
        unpack_hi(a, t, k1); unpack_lo(a, t+1, k1); unpack_hi(a, t+2, k0); unpack_lo(a, t+3, k0)
        for i in range(4):
            a(f"v_fma_f32 v{t+i}, v{t+i}, s36, v{ACC+4*j+i}")
        o = 104 + 2*j
        a(f"v_cvt_pk_bf16_f32 v{o}, v{t}, v{t+1}")
        a(f"v_cvt_pk_bf16_f32 v{o+1}, v{t+2}, v{t+3}")
        a(f"buffer_store_dwordx2 {vr(o, 2)}, v14, s[24:27], 0 offen offset:{512*j}")
    a(f"{NAME}_done:")
    a("s_endpgm")
    return a
```

```python
from common import *

NAME = "ffn_kernel"
GRID = 256
RING = 0
XOFF = 73728
LDS = 2 * 73728

V_W1, V_W2, V_L16 = 2, 3, 4
V_T1, V_T2, V_X, V_H = (5, 6), (7, 8), (9, 10), 11
ACC = (32, 64)
AFR = (96, 104, 112)
TMP = 120
HP = 136
BV = 224
S_W1, S_W3, S_W2, S_H2, S_P = 8, 12, 16, 20, 24
S_WAVE, S_M, S_X = 28, 29, 30
S_OFF, S_M0A, S_M0B, S_M0X, S_OFF2, S_POFF, S_CNT, S_XOFF, S_NL2E = 31, 32, 33, 34, 35, 36, 37, 38, 39
W1_UNIT = 32 * 9216
W2_UNIT = 32 * 1152
STORE_FLAGS = "nt"


def breg(fi):
    return ar(4 * fi, 4) if fi < 64 else vr(BV + 4 * (fi - 64), 4)


class VM:
    def __init__(self):
        self.q = []

    def issue(self, tag):
        self.q.append(tag)

    def wait_for(self, pred):
        last = -1
        for i, t in enumerate(self.q):
            if pred(t):
                last = i
        n = len(self.q) - 1 - last
        self.q = self.q[last + 1:]
        assert n <= 63
        return n


COST = {"valu": 4, "trans": 8, "other": 4}


def cost(s):
    op = s.split()[0]
    if op in ("v_exp_f32", "v_rcp_f32"):
        return 8
    return 4


def interleave(a, mfmas, fixed, queue, budget=8, tail=None):
    n = len(mfmas)
    fixed = list(fixed)
    for i, m in enumerate(mfmas):
        a(m)
        used = 0
        left = n - i
        while fixed and (used < budget or len(fixed) > 2 * (left - 1)):
            it = fixed.pop(0)
            a(it); used += cost(it)
        while queue and used + cost(queue[0]) <= budget:
            it = queue.pop(0)
            a(it); used += cost(it)
    assert not fixed


def swiglu_items(buf):
    out = []
    for tt in range(4):
        for h in range(2):
            g0 = ACC[buf] + 4 * tt + 2 * h
            u0 = ACC[buf] + 16 + 4 * tt + 2 * h
            k = (2 * tt + h) % 2
            t0, t1, p0, p1 = (TMP + 4 * k + i for i in range(4))
            out += [f"v_mul_f32 v{t0}, s{S_NL2E}, v{g0}",
                    f"v_mul_f32 v{t1}, s{S_NL2E}, v{g0+1}",
                    f"v_exp_f32 v{t0}, v{t0}",
                    f"v_exp_f32 v{t1}, v{t1}",
                    f"v_mul_f32 v{p0}, v{g0}, v{u0}",
                    f"v_mul_f32 v{p1}, v{g0+1}, v{u0+1}",
                    f"v_add_f32 v{t0}, 1.0, v{t0}",
                    f"v_add_f32 v{t1}, 1.0, v{t1}",
                    f"v_rcp_f32 v{t0}, v{t0}",
                    f"v_rcp_f32 v{t1}, v{t1}",
                    f"v_mul_f32 v{p0}, v{p0}, v{t0}",
                    f"v_mul_f32 v{p1}, v{p1}, v{t1}",
                    f"v_cvt_pk_bf16_f32 v{HP + 2*tt + h}, v{p0}, v{p1}"]
        out.append(f"ds_write_b64 v{V_H}, {vr(HP + 2*tt, 2)} offset:{1024*tt}")
    out.append(f"v_add_u32 v{V_H}, 0x2000, v{V_H}")
    return out


def tr1(slot_regs, unit):
    s = unit % 9
    base, off = (V_T1[0], s * 8192) if s < 4 else (V_T1[1], (s - 4) * 8192)
    out = []
    for mat in range(2):
        for t in range(2):
            out.append(f"ds_read_b64_tr_b16 {vr(slot_regs + 4*mat + 2*t, 2)}, v{base} offset:{off + 1024*mat + 512*t}")
    return out


def tr2(slot_regs, unit):
    s = unit % 18
    base, off = (V_T2[0], s * 4096) if s < 9 else (V_T2[1], (s - 9) * 4096)
    return [f"ds_read_b64_tr_b16 {vr(slot_regs + 2*t, 2)}, v{base} offset:{off + 2048*t}" for t in range(2)]


def xread(fi):
    base, off = (V_X[0], fi * 1024) if fi < 64 else (V_X[1], (fi - 64) * 1024)
    return f"ds_read_b128 {breg(fi)}, v{base} offset:{off}"


def dma_w13(vm, c, j):
    u = j % 18
    out = [f"s_add_u32 m0, s{S_M0A}, {(j % 9) * 8192}"]
    adv = W1_UNIT if u != 0 else 128 - 17 * W1_UNIT
    out.append(f"s_add_u32 s{S_OFF}, s{S_OFF}, {adv & 0xffffffff}")
    out.append(f"buffer_load_dwordx4 v{V_W1}, s[{S_W1}:{S_W1+3}], s{S_OFF} offen lds")
    out.append(f"buffer_load_dwordx4 v{V_W1}, s[{S_W3}:{S_W3+3}], s{S_OFF} offen offset:1024 lds")
    cc = c + j // 18
    vm.issue(("W", cc, u)); vm.issue(("W", cc, u))
    return out


def dma_w2(vm, c2, j, first=False, guard=False):
    u = j % 18
    out = [f"s_add_u32 m0, s{S_M0B}, {u * 4096}"]
    if first:
        out.append("s_nop 0")
    elif u != 0:
        out.append(f"s_add_u32 s{S_OFF2}, s{S_OFF2}, {W2_UNIT}")
    else:
        out.append(f"s_add_u32 s{S_OFF2}, s{S_OFF2}, {(128 - 17 * W2_UNIT) & 0xffffffff}")
        if guard:
            out.append(f"s_cmp_eq_u32 s{S_CNT}, 1")
            out.append(f"s_cselect_b32 s{S_OFF2}, 0x70000000, s{S_OFF2}")
    out.append(f"buffer_load_dwordx4 v{V_W2}, s[{S_W2}:{S_W2+3}], s{S_OFF2} offen lds")
    vm.issue(("V", c2 + j // 18, u))
    return out


def dma_x(vm, ks):
    out = [f"s_add_u32 m0, s{S_M0X}, {ks * 4096}",
           f"s_add_u32 s{S_XOFF}, s{S_XOFF}, 4096" if ks else "s_nop 0",
           f"buffer_load_dwordx4 v{V_L16}, s[{S_H2}:{S_H2+3}], s{S_XOFF} offen lds"]
    vm.issue(("X", ks))
    return out


def p1_chunk(vm, c, last=False):
    a = Asm()
    buf = c % 2
    q = swiglu_items(1 - buf) if c > 0 else []
    for j in range(18):
        a("s_waitcnt lgkmcnt(0)")
        if j % 2 == 0:
            def need(t, j=j):
                if t[0] == "W":
                    return (t[1], t[2]) <= ((c, j + 2) if j + 2 < 18 else (c + 1, j + 2 - 18))
                if t[0] == "X":
                    return t[1] <= j + 2
                return False
            n = vm.wait_for(need)
            a(f"s_waitcnt vmcnt({n})")
            a("s_barrier")
        fixed = []
        nxt = j + 1
        if not (last and nxt == 18):
            fixed += tr1(AFR[nxt % 2], nxt)
        if c == 0 and nxt < 18:
            fixed += [xread(4 * nxt + tt) for tt in range(4)]
        if last and j >= 10:
            v = 2 * (j - 10)
            fixed += dma_w2(vm, 0, v, first=(v == 0))
            fixed += dma_w2(vm, 0, v + 1)
        else:
            fixed += dma_w13(vm, c, j + 8)
        if c == 0 and j + 8 < 18:
            fixed += dma_x(vm, j + 8)
        mf = []
        for g in range(2):
            for tt in range(4):
                acc = vr(ACC[buf] + 16 * g + 4 * tt, 4)
                src = acc if j else "0"
                mf.append(f"v_mfma_f32_16x16x32_bf16 {acc}, {vr(AFR[j % 2] + 4*g, 4)}, {breg(4*j + tt)}, {src}")
        interleave(a, mf, fixed, q if j >= 1 else [])
    for it in q:
        a(it)
    return a


def store_items(vm, buf):
    out = []
    for tp in range(2):
        for k in range(2):
            tt = 2 * tp + k
            c0 = ACC[buf] + 4 * tt
            out.append(f"v_cvt_pk_bf16_f32 v{HP + 4*tp + 2*k}, v{c0}, v{c0+1}")
            out.append(f"v_cvt_pk_bf16_f32 v{HP + 4*tp + 2*k + 1}, v{c0+2}, v{c0+3}")
        out.append(("store", f"buffer_store_dwordx4 {vr(HP + 4*tp, 4)}, v{V_L16}, s[{S_P}:{S_P+3}], s{S_POFF} offen offset:{1024*tp} {STORE_FLAGS}"))
    out.append(f"s_add_u32 s{S_POFF}, s{S_POFF}, 8192")
    return out


def p2_chunk(vm, c, guard):
    a = Asm()
    buf = c % 2
    st = store_items(vm, 1 - buf) if c > 0 else []
    nrd = 6 if c == 0 else 2
    for j in range(18):
        if c == 0:
            pend = 6 if j + 1 < 18 else 2
        else:
            pend = 2
        a(f"s_waitcnt lgkmcnt({pend})")
        if j % 6 == 0:
            if not (c == 0 and j == 0):
                lim = (c, j + 7) if j + 7 < 18 else (c + 1, j + 7 - 18)
                n = vm.wait_for(lambda t: t[0] == "V" and (t[1], t[2]) <= lim)
                a(f"s_waitcnt vmcnt({n})")
            a("s_barrier")
        fixed = tr2(AFR[(j + 2) % 3], j + 2)
        if c == 0 and j + 2 < 18:
            fixed += [xread(4 * (j + 2) + tt) for tt in range(4)]
        if not (c == 0 and j < 3):
            fixed += dma_w2(vm, c, j + 13, guard=guard)
        if j >= 2:
            k = 0
            while st and k < 2:
                it = st.pop(0); k += 1
                if isinstance(it, tuple):
                    vm.issue(("S",)); it = it[1]
                fixed.append(it)
        mf = []
        for tt in range(4):
            acc = vr(ACC[buf] + 4 * tt, 4)
            src = acc if j else "0"
            mf.append(f"v_mfma_f32_16x16x32_bf16 {acc}, {vr(AFR[j % 3], 4)}, {breg(4*j + tt)}, {src}")
        interleave(a, mf, fixed, [])
    assert not st
    return a


def gen():
    a = Asm()
    kernel_begin(a, NAME)
    a(f"s_cmp_ge_u32 s2, {GRID}")
    a(f"s_cbranch_scc1 {NAME}_done")
    load_ptr(a, 40, "w1"); load_ptr(a, 42, "w3"); load_ptr(a, 44, "w2"); load_ptr(a, 46, "ws")
    wave_id(a, S_WAVE, 1)
    a(f"s_and_b32 s{S_X}, s2, 7")
    a(f"s_lshr_b32 s{S_M}, s2, 3")
    a("v_and_b32 v1, 63, v0")
    a(f"v_lshlrev_b32 v{V_L16}, 4, v1")
    a("v_lshrrev_b32 v12, 3, v1")
    a("v_and_b32 v13, 7, v1")
    a("v_bfe_u32 v14, v1, 4, 1")
    a(f"s_and_b32 s48, s{S_WAVE}, 1")
    a("s_lshl_b32 s49, s48, 1")
    a("v_or_b32 v14, s49, v14")
    a("v_lshlrev_b32 v14, 1, v14")
    a("v_xor_b32 v14, v13, v14")
    a("v_lshlrev_b32 v14, 4, v14")
    a(f"v_mul_u32_u24 v{V_W1}, 9216, v12")
    a(f"v_add_u32 v{V_W1}, v{V_W1}, v14")
    a("v_bfe_u32 v14, v1, 4, 2")
    a("v_lshlrev_b32 v14, 1, v14")
    a("v_xor_b32 v14, v13, v14")
    a("v_lshlrev_b32 v14, 4, v14")
    a(f"v_mul_u32_u24 v{V_W2}, 1152, v12")
    a(f"v_add_u32 v{V_W2}, v{V_W2}, v14")
    a("s_waitcnt lgkmcnt(0)")
    make_srd(a, S_W1, 40, D * F * 2)
    make_srd(a, S_W3, 42, D * F * 2 + 1024, add=-1024)
    make_srd(a, S_W2, 44, D * F * 2)
    make_srd(a, S_H2, 46, TD_BYTES, add=WS_H2F)
    make_srd(a, S_P, 46, PART_BYTES, add=WS_PART)
    a(f"s_mul_i32 s{S_OFF}, s{S_WAVE}, {8 * 9216}")
    a(f"s_mul_i32 s48, s{S_X}, 1152")
    a(f"s_add_u32 s{S_OFF}, s{S_OFF}, s48")
    a(f"s_mul_i32 s{S_OFF2}, s{S_X}, {576 * 1152}")
    a(f"s_mul_i32 s48, s{S_WAVE}, {8 * 1152}")
    a(f"s_add_u32 s{S_OFF2}, s{S_OFF2}, s48")
    a(f"s_lshl_b32 s{S_M0A}, s{S_WAVE}, 11")
    a(f"s_lshl_b32 s{S_M0B}, s{S_WAVE}, 10")
    a(f"s_add_u32 s{S_M0X}, s{S_M0B}, {XOFF}")
    a(f"s_mul_i32 s{S_XOFF}, s{S_M}, {72 * 1024}")
    a(f"s_add_u32 s{S_XOFF}, s{S_XOFF}, s{S_M0B}")
    a(f"s_lshl_b32 s48, s{S_X}, 5")
    a(f"s_add_u32 s48, s48, s{S_M}")
    a(f"s_mul_i32 s{S_POFF}, s48, {72 * 1024}")
    a(f"s_lshl_b32 s48, s{S_WAVE}, 11")
    a(f"s_add_u32 s{S_POFF}, s{S_POFF}, s48")
    a(f"s_mov_b32 s{S_NL2E}, {f32hex(-LOG2E)}")
    vm = VM()
    for j in range(8):
        for it in dma_x(vm, j):
            a(it)
        if j == 0:
            a(f"s_mov_b32 m0, s{S_M0A}")
            a("s_nop 0")
            a(f"buffer_load_dwordx4 v{V_W1}, s[{S_W1}:{S_W1+3}], s{S_OFF} offen lds")
            a(f"buffer_load_dwordx4 v{V_W1}, s[{S_W3}:{S_W3+3}], s{S_OFF} offen offset:1024 lds")
            vm.issue(("W", 0, 0)); vm.issue(("W", 0, 0))
        else:
            for it in dma_w13(vm, 0, j):
                a(it)
    a("v_and_b32 v12, 15, v1")
    a("v_lshrrev_b32 v13, 4, v1")
    a("v_lshrrev_b32 v14, 2, v12")
    a("v_lshlrev_b32 v14, 7, v14")
    a("v_and_b32 v15, 3, v12")
    a("v_lshl_add_u32 v14, v15, 3, v14")
    a("v_lshrrev_b32 v15, 3, v12")
    a("v_and_b32 v16, 1, v13")
    a("v_lshl_add_u32 v15, v16, 1, v15")
    a(f"v_xor_b32 v15, s{S_WAVE}, v15")
    a("v_lshl_add_u32 v14, v15, 5, v14")
    a(f"v_lshl_add_u32 v{V_T1[0]}, v13, 11, v14")
    a(f"v_add_u32 v{V_T1[1]}, 0x8000, v{V_T1[0]}")
    a("v_lshl_add_u32 v14, v16, 9, v14")
    a("v_lshrrev_b32 v15, 1, v13")
    a(f"v_lshl_add_u32 v{V_T2[0]}, v15, 10, v14")
    a(f"v_add_u32 v{V_T2[1]}, {9 * 4096}, v{V_T2[0]}")
    a(f"v_add_u32 v{V_X[0]}, {XOFF}, v{V_L16}")
    a(f"v_add_u32 v{V_X[1]}, 0x10000, v{V_X[0]}")
    a(f"s_and_b32 s48, s{S_WAVE}, 1")
    a("s_lshl_b32 s48, s48, 3")
    a(f"s_lshr_b32 s49, s{S_WAVE}, 1")
    a("s_lshl_b32 s49, s49, 12")
    a("s_add_u32 s48, s48, s49")
    a(f"v_add_u32 v{V_H}, s48, v{V_X[0]}")
    n = vm.wait_for(lambda t: (t[0] == "W" and t[2] == 0) or (t[0] == "X" and t[1] == 0))
    a(f"s_waitcnt vmcnt({n})")
    a("s_barrier")
    for it in tr1(AFR[0], 0) + [xread(tt) for tt in range(4)]:
        a(it)
    a.extend(p1_chunk(vm, 0).lines)
    bodies = [p1_chunk(vm, c).lines for c in range(1, 8)]
    assert bodies[0] == bodies[2] == bodies[4] == bodies[6] and bodies[1] == bodies[3] == bodies[5]
    a(f"s_mov_b32 s{S_CNT}, 4")
    a(f"{NAME}_l1:")
    a.extend(bodies[0])
    a(f"s_sub_u32 s{S_CNT}, s{S_CNT}, 1")
    a(f"s_cmp_eq_u32 s{S_CNT}, 0")
    a(f"s_cbranch_scc1 {NAME}_l1x")
    a.extend(bodies[1])
    a(f"s_branch {NAME}_l1")
    a(f"{NAME}_l1x:")
    a.extend(p1_chunk(vm, 8, last=True).lines)
    a("s_nop 7")
    for it in swiglu_items(0):
        a(it)
    a("s_waitcnt lgkmcnt(0)")
    n = vm.wait_for(lambda t: t[0] == "V" and (t[1], t[2]) <= (0, 7))
    a(f"s_waitcnt vmcnt({n})")
    a("s_barrier")
    for j in range(2):
        for it in tr2(AFR[j], j) + [xread(4 * j + tt) for tt in range(4)]:
            a(it)
    a.extend(p2_chunk(vm, 0, False).lines)
    bodies = [p2_chunk(vm, c, True).lines for c in range(1, 9)]
    assert bodies[0] == bodies[2] == bodies[4] == bodies[6], "odd"
    assert bodies[1] == bodies[3] == bodies[5] == bodies[7], "even"
    a(f"s_mov_b32 s{S_CNT}, 8")
    a(f"{NAME}_l2:")
    a.extend(bodies[0])
    a(f"s_sub_u32 s{S_CNT}, s{S_CNT}, 1")
    a.extend(bodies[1])
    a(f"s_sub_u32 s{S_CNT}, s{S_CNT}, 1")
    a(f"s_cmp_lg_u32 s{S_CNT}, 0")
    a(f"s_cbranch_scc1 {NAME}_l2")
    a("s_nop 7")
    for it in store_items(vm, 0):
        a(it[1] if isinstance(it, tuple) else it)
    a(f"{NAME}_done:")
    a("s_endpgm")
    return a
```

```python
from common import *

NAME = "mix_kernel"
GRID = 128
NW = 9
BLOCK = 64 * NW
ZOFF = 0
POFF = NW * 2048
ROFF = POFF + NW * 1536
LDS = ROFF + 2 * NW * 128


def xlane_sum(a, regs, tmp):
    for r in regs:
        a(f"v_mov_b32 v{tmp}, v{r}")
        a("s_nop 1")
        a(f"v_permlane32_swap_b32 v{tmp}, v{r}")
        a("s_nop 1")
        a(f"v_add_f32 v{r}, v{r}, v{tmp}")
        a(f"v_mov_b32 v{tmp}, v{r}")
        a("s_nop 1")
        a(f"v_permlane16_swap_b32 v{tmp}, v{r}")
        a("s_nop 1")
        a(f"v_add_f32 v{r}, v{r}, v{tmp}")


def ln_stats(a, rnd, s, ss, mean, rstd, tmp):
    xlane_sum(a, [s, ss], tmp)
    base = ROFF + rnd * NW * 128
    a(f"ds_write_b64 v12, {vr(s, 2)} offset:{base}")
    a("s_waitcnt lgkmcnt(0)")
    a("s_barrier")
    for w in range(NW):
        a(f"ds_read_b64 {vr(tmp + 2*w, 2)}, v13 offset:{base + 128*w}")
    a("s_waitcnt lgkmcnt(0)")
    for w in range(1, NW):
        a(f"v_add_f32 v{tmp}, v{tmp}, v{tmp+2*w}")
        a(f"v_add_f32 v{tmp+1}, v{tmp+1}, v{tmp+2*w+1}")
    inv = f32hex(1.0 / D)
    a(f"v_mul_f32 v{mean}, {inv}, v{tmp}")
    a(f"v_mul_f32 v{tmp+1}, {inv}, v{tmp+1}")
    a(f"v_fma_f32 v{tmp+1}, -v{mean}, v{mean}, v{tmp+1}")
    a(f"v_max_f32 v{tmp+1}, 0, v{tmp+1}")
    a(f"v_add_f32 v{tmp+1}, {f32hex(1e-5)}, v{tmp+1}")
    a(f"v_rsq_f32 v{rstd}, v{tmp+1}")
    a("s_nop 0")


def gen():
    a = Asm()
    kernel_begin(a, NAME)
    a(f"s_cmp_ge_u32 s2, {GRID}")
    a(f"s_cbranch_scc1 {NAME}_done")
    load_ptr(a, 4, "q"); load_ptr(a, 6, "ws")
    wave_id(a, 12, 1)
    a("s_and_b32 s13, s2, 7")
    a("s_lshl_b32 s13, s13, 4")
    a("s_lshr_b32 s14, s2, 3")
    a("s_add_u32 s13, s13, s14")
    a("v_and_b32 v1, 63, v0")
    a("v_and_b32 v2, 15, v1")
    a("v_lshrrev_b32 v3, 4, v1")
    a("s_waitcnt lgkmcnt(0)")
    make_srd(a, 16, 4, TD_BYTES)
    make_srd(a, 20, 6, TD_BYTES, add=WS_ZT)
    make_srd(a, 24, 6, 6 * D * 4, add=WS_MOD)
    make_srd(a, 28, 6, TD_BYTES, add=WS_X1)
    make_srd(a, 32, 6, TD_BYTES, add=WS_H2F)
    a("v_lshrrev_b32 v4, 1, v1")
    a("v_lshlrev_b32 v4, 12, v4")
    a("v_and_b32 v5, 1, v1")
    a("v_lshl_add_u32 v4, v5, 4, v4")
    a("s_lshl_b32 s15, s12, 18")
    a("s_lshl_b32 s36, s13, 5")
    a("s_add_u32 s15, s15, s36")
    a("s_lshl_b32 s37, s12, 11")
    a("s_mov_b32 m0, s37")
    a("s_add_u32 s38, s15, 0x20000")
    a("buffer_load_dwordx4 v4, s[20:23], s15 offen lds")
    a("s_add_u32 m0, s37, 1024")
    a("s_nop 0")
    a("buffer_load_dwordx4 v4, s[20:23], s38 offen lds")
    a("v_mul_u32_u24 v5, 2304, v3")
    a("v_lshl_add_u32 v5, v2, 4, v5")
    a("s_lshl_b32 s39, s12, 8")
    a(f"s_mul_i32 s40, s12, 1536")
    a(f"s_add_u32 s40, s40, {POFF}")
    a("s_mov_b32 m0, s40")
    a(f"s_add_u32 s41, s39, {4*2304}")
    a("buffer_load_dwordx4 v5, s[24:27], s39 offen lds")
    a("s_add_u32 m0, s40, 1024")
    a("v_cmp_gt_u32 vcc, 32, v1")
    a("s_and_saveexec_b64 s[42:43], vcc")
    a("buffer_load_dwordx4 v5, s[24:27], s41 offen lds")
    a("s_mov_b64 exec, s[42:43]")
    a(f"v_mul_u32_u24 v6, 1152, v2")
    a("v_lshl_add_u32 v6, v3, 4, v6")
    a(f"s_mul_i32 s44, s13, {16*1152}")
    a("s_lshl_b32 s45, s12, 7")
    a("s_add_u32 s44, s44, s45")
    Q = 16
    a(f"buffer_load_dwordx4 {vr(Q, 4)}, v6, s[16:19], s44 offen")
    a(f"buffer_load_dwordx4 {vr(Q+4, 4)}, v6, s[16:19], s44 offen offset:64")
    a("v_lshrrev_b32 v7, 2, v2")
    a("v_lshl_add_u32 v7, v3, 3, v7")
    a("v_lshlrev_b32 v7, 5, v7")
    a("v_and_b32 v8, 3, v2")
    a("v_lshl_add_u32 v7, v8, 3, v7")
    a("v_add_u32 v7, s37, v7")
    a("v_lshlrev_b32 v8, 5, v3")
    a("v_add_u32 v8, s40, v8")
    a("s_lshl_b32 s46, s12, 7")
    a("v_lshlrev_b32 v13, 3, v2")
    a("v_add_u32 v12, s46, v13")
    a("s_lshr_b32 s47, s13, 2")
    a("s_mul_i32 s47, s47, 18")
    a("s_lshl_b32 s48, s12, 1")
    a("s_add_u32 s47, s47, s48")
    a("s_lshl_b32 s47, s47, 2")
    a("s_and_b32 s48, s13, 3")
    a("s_add_u32 s47, s47, s48")
    a("s_lshl_b32 s47, s47, 10")
    a("s_add_u32 s48, s47, 4096")
    a("v_lshlrev_b32 v9, 4, v1")
    X = 24
    a("s_waitcnt vmcnt(0)")
    for e in range(16):
        (unpack_lo if e % 2 == 0 else unpack_hi)(a, X + e, Q + e // 2)
    a(f"v_mov_b32 v10, v{X}")
    a(f"v_mul_f32 v11, v{X}, v{X}")
    for e in range(1, 16):
        a(f"v_add_f32 v10, v10, v{X+e}")
        a(f"v_fmac_f32 v11, v{X+e}, v{X+e}")
    Z, P, TMP = 40, 48, 96
    for i in range(2):
        a(f"ds_read_b64_tr_b16 {vr(Z+4*i, 2)}, v7 offset:{1024*i}")
        a(f"ds_read_b64_tr_b16 {vr(Z+4*i+2, 2)}, v7 offset:{1024*i+128}")
    ln_stats(a, 0, 10, 11, 14, 15, TMP)
    a("v_mul_f32 v14, v14, v15")
    H = 64

    def params(vec, i, dst):
        a(f"ds_read_b128 {vr(dst, 4)}, v8 offset:{256*vec + 128*i}")
        a(f"ds_read_b128 {vr(dst+4, 4)}, v8 offset:{256*vec + 128*i + 16}")

    for i in range(2):
        params(1, i, P); params(0, i, P + 8); params(2, i, 80)
        a("s_waitcnt lgkmcnt(0)")
        for e in range(8):
            x = X + 8*i + e
            h = H + 8*i + e
            t = TMP + e
            (unpack_lo if e % 2 == 0 else unpack_hi)(a, t, Z + 4*i + e // 2)
            a(f"v_fma_f32 v{h}, v{x}, v15, -v14")
            a(f"v_fma_f32 v{h}, v{h}, v{P+e}, v{P+8+e}")
            a(f"v_mul_f32 v{h}, v{h}, v{t}")
            a(f"v_fma_f32 v{h}, v{h}, v{80+e}, v{x}")
    X1P = 16
    for k in range(8):
        a(f"v_cvt_pk_bf16_f32 v{X1P+k}, v{H+2*k}, v{H+2*k+1}")
    a(f"buffer_store_dwordx4 {vr(X1P, 4)}, v6, s[28:31], s44 offen")
    a(f"buffer_store_dwordx4 {vr(X1P+4, 4)}, v6, s[28:31], s44 offen offset:64")
    for e in range(16):
        (unpack_lo if e % 2 == 0 else unpack_hi)(a, H + e, X1P + e // 2)
    a(f"v_mov_b32 v10, v{H}")
    a(f"v_mul_f32 v11, v{H}, v{H}")
    for e in range(1, 16):
        a(f"v_add_f32 v10, v10, v{H+e}")
        a(f"v_fmac_f32 v11, v{H+e}, v{H+e}")
    ln_stats(a, 1, 10, 11, 14, 15, TMP)
    a("v_mul_f32 v14, v14, v15")
    for i in range(2):
        params(4, i, P); params(3, i, P + 8)
        a("s_waitcnt lgkmcnt(0)")
        for e in range(8):
            h = H + 8*i + e
            a(f"v_fma_f32 v{h}, v{h}, v15, -v14")
            a(f"v_fma_f32 v{h}, v{h}, v{P+e}, v{P+8+e}")
        o = 24 + 4*i
        for k in range(4):
            a(f"v_cvt_pk_bf16_f32 v{o+k}, v{H+8*i+2*k}, v{H+8*i+2*k+1}")
        a(f"buffer_store_dwordx4 {vr(o, 4)}, v9, s[32:35], s{47+i} offen")
    a(f"{NAME}_done:")
    a("s_endpgm")
    return a
```

```python
from common import *

NAME = "pre_kernel"
N_MOD, N_KV = 54, 288
GRID = N_MOD + N_KV
LDS = 12288


def gen():
    a = Asm()
    kernel_begin(a, NAME)
    a(f"s_cmp_ge_u32 s2, {GRID}")
    a(f"s_cbranch_scc1 {NAME}_done")
    a(f"s_cmp_lt_u32 s2, {N_MOD}")
    a(f"s_cbranch_scc1 {NAME}_mod")
    gen_kv(a)
    a(f"s_branch {NAME}_done")
    a(f"{NAME}_mod:")
    gen_mod(a)
    a(f"{NAME}_done:")
    a("s_endpgm")
    return a


def gen_kv(a):
    load_ptr(a, 4, "k"); load_ptr(a, 6, "v"); load_ptr(a, 8, "shift_k"); load_ptr(a, 10, "ws")
    a(f"s_sub_u32 s12, s2, {N_MOD}")
    m = magic_div(N_KV, 9)
    a(f"s_mul_i32 s13, s12, {m}")
    a("s_lshr_b32 s13, s13, 16")
    a("s_mul_i32 s14, s13, 9")
    a("s_sub_u32 s14, s12, s14")
    a("v_and_b32 v1, 7, v0")
    a("v_lshrrev_b32 v2, 3, v0")
    a("s_waitcnt lgkmcnt(0)")
    make_srd(a, 16, 4, TD_BYTES)
    make_srd(a, 20, 6, TD_BYTES)
    make_srd(a, 24, 8, D * 4 * 2)
    make_srd(a, 28, 10, TD_BYTES, add=WS_UT)
    a(f"s_mul_i32 s15, s13, {64 * 1152}")
    a("s_lshl_b32 s32, s14, 7")
    a("s_add_u32 s15, s15, s32")
    a(f"v_mul_u32_u24 v3, {2 * 1152}, v2")
    a("v_lshl_add_u32 v3, v1, 4, v3")
    a("v_add_u32 v3, s15, v3")
    K, V, SK = 16, 36, 44
    for j in range(5):
        dt = j - 3
        if dt < 0:
            a(f"v_subrev_u32 v{4+j}, {-dt * 1152}, v3")
        elif dt == 0:
            a(f"v_mov_b32 v{4+j}, v3")
        else:
            a(f"v_add_u32 v{4+j}, {dt * 1152}, v3")
    for j in range(5):
        a(f"buffer_load_dwordx4 {vr(K+4*j, 4)}, v{4+j}, s[16:19], 0 offen")
    a(f"buffer_load_dwordx4 {vr(V, 4)}, v7, s[20:23], 0 offen")
    a(f"buffer_load_dwordx4 {vr(V+4, 4)}, v8, s[20:23], 0 offen")
    a("s_lshl_b32 s33, s14, 9")
    a("v_lshlrev_b32 v9, 6, v1")
    a("v_add_u32 v9, s33, v9")
    for j in range(4):
        a(f"buffer_load_dwordx4 {vr(SK+4*j, 4)}, v9, s[24:27], 0 offen offset:{16*j}")
    a("v_mul_u32_u24 v10, 288, v2")
    a("v_lshl_add_u32 v10, v1, 4, v10")
    a("s_waitcnt vmcnt(0)")
    T, R0, R1 = 60, 80, 88
    for e in range(8):
        un = unpack_lo if e % 2 == 0 else unpack_hi
        s0, s1, s2, s3 = T, T + 1, T + 2, T + 3
        unpack_lo(a, s0, SK + 2 * e); unpack_hi(a, s1, SK + 2 * e)
        unpack_lo(a, s2, SK + 2 * e + 1); unpack_hi(a, s3, SK + 2 * e + 1)
        kk = [T + 4 + j for j in range(5)]
        for j in range(5):
            un(a, kk[j], K + 4 * j + e // 2)
        v0_, v1_ = T + 9, T + 10
        un(a, v0_, V + e // 2); un(a, v1_, V + 4 + e // 2)
        a(f"v_mul_f32 v{R0+e}, v{kk[0]}, v{s3}")
        a(f"v_mul_f32 v{R1+e}, v{kk[1]}, v{s3}")
        a(f"v_fmac_f32 v{R0+e}, v{kk[1]}, v{s2}")
        a(f"v_fmac_f32 v{R1+e}, v{kk[2]}, v{s2}")
        a(f"v_fmac_f32 v{R0+e}, v{kk[2]}, v{s1}")
        a(f"v_fmac_f32 v{R1+e}, v{kk[3]}, v{s1}")
        a(f"v_fmac_f32 v{R0+e}, v{kk[3]}, v{s0}")
        a(f"v_fmac_f32 v{R1+e}, v{kk[4]}, v{s0}")
        a(f"v_mul_f32 v{R0+e}, v{R0+e}, v{v0_}")
        a(f"v_mul_f32 v{R1+e}, v{R1+e}, v{v1_}")
    for i in range(4):
        a(f"v_cvt_pk_bf16_f32 v{96+i}, v{R0+2*i}, v{R0+2*i+1}")
        a(f"v_cvt_pk_bf16_f32 v{100+i}, v{R1+2*i}, v{R1+2*i+1}")
    a("ds_write_b128 v10, v[96:99]")
    a("ds_write_b128 v10, v[100:103] offset:144")
    wave_id(a, 34, 11)
    a("v_and_b32 v11, 63, v0")
    a("v_lshrrev_b32 v12, 4, v11")
    a("v_and_b32 v13, 15, v11")
    a("v_lshrrev_b32 v14, 2, v13")
    a("v_lshlrev_b32 v15, 3, v12")
    a("v_sub_u32 v15, v15, v14")
    a("v_add_u32 v15, 3, v15")
    a("v_mul_u32_u24 v15, 144, v15")
    a("v_and_b32 v14, 3, v13")
    a("v_lshl_add_u32 v15, v14, 3, v15")
    a("s_lshl_b32 s35, s34, 5")
    a("v_add_u32 v15, s35, v15")
    a("s_lshl_b32 s36, s14, 6")
    a("s_lshl_b32 s37, s34, 4")
    a("s_add_u32 s36, s36, s37")
    a("v_add_u32 v14, s36, v13")
    a("v_lshlrev_b32 v14, 12, v14")
    a("v_lshl_add_u32 v14, v12, 4, v14")
    a("s_lshl_b32 s37, s13, 7")
    a("v_add_u32 v14, s37, v14")
    a("s_waitcnt lgkmcnt(0)")
    a("s_barrier")
    for rho in range(2):
        base = rho * 32 * 144
        a(f"ds_read_b64_tr_b16 {vr(16+4*rho, 2)}, v15 offset:{base + 4*144}")
        a(f"ds_read_b64_tr_b16 {vr(18+4*rho, 2)}, v15 offset:{base}")
    a("s_waitcnt lgkmcnt(2)")
    a("buffer_store_dwordx4 v[16:19], v14, s[28:31], 0 offen")
    a("s_waitcnt lgkmcnt(0)")
    a("buffer_store_dwordx4 v[20:23], v14, s[28:31], 0 offen offset:64")


def gen_mod(a):
    load_ptr(a, 4, "c"); load_ptr(a, 6, "w_mod"); load_ptr(a, 10, "ws")
    a("v_and_b32 v1, 7, v0")
    a("v_lshrrev_b32 v2, 3, v0")
    a("s_waitcnt lgkmcnt(0)")
    make_srd(a, 16, 4, D * 2)
    make_srd(a, 20, 6, D * 6 * D * 2)
    make_srd(a, 28, 10, 6 * D * 4, add=WS_MOD)
    a("v_lshlrev_b32 v3, 1, v0")
    for i in range(3):
        a(f"buffer_load_ushort v{4+i}, v3, s[16:19], 0 offen offset:{512*i}")
    a("v_mul_u32_u24 v7, 6912, v2")
    a("v_lshl_add_u32 v7, v1, 4, v7")
    a("s_lshl_b32 s12, s2, 7")
    W = 16
    for j in range(18):
        a(f"buffer_load_dwordx4 {vr(W+4*j, 4)}, v7, s[20:23], s12 offen")
        if j < 17:
            a(f"s_add_u32 s12, s12, {32*6912}")
    a("s_waitcnt vmcnt(18)")
    a("v_lshlrev_b32 v8, 2, v0")
    for i in range(3):
        a(f"v_lshlrev_b32 v{4+i}, 16, v{4+i}")
        a(f"v_mul_f32 v9, {f32hex(-LOG2E)}, v{4+i}")
        a("v_exp_f32 v9, v9")
        a("s_nop 0")
        a("v_add_f32 v9, 1.0, v9")
        a("v_rcp_f32 v9, v9")
        a("s_nop 0")
        a(f"v_mul_f32 v9, v{4+i}, v9")
        a("v_cvt_pk_bf16_f32 v9, v9, v9")
        a("v_lshlrev_b32 v9, 16, v9")
        a(f"ds_write_b32 v8, v9 offset:{1024*i}")
    a("s_waitcnt lgkmcnt(0)")
    a("s_barrier")
    a("v_lshlrev_b32 v8, 2, v2")
    SV = 88
    for j in range(18):
        a(f"ds_read_b32 v{SV+j}, v8 offset:{128*j}")
    ACC, T = 108, 116
    for e in range(8):
        a(f"v_mov_b32 v{ACC+e}, 0")
    a("s_waitcnt lgkmcnt(0)")
    for j in range(18):
        a(f"s_waitcnt vmcnt({17-j})")
        for i in range(4):
            unpack_lo(a, T, W + 4*j + i); unpack_hi(a, T + 1, W + 4*j + i)
            a(f"v_fmac_f32 v{ACC+2*i}, v{T}, v{SV+j}")
            a(f"v_fmac_f32 v{ACC+2*i+1}, v{T+1}, v{SV+j}")
    a("v_lshlrev_b32 v9, 8, v2")
    a("v_lshl_add_u32 v9, v1, 5, v9")
    a(f"ds_write_b128 v9, {vr(ACC, 4)} offset:3072")
    a(f"ds_write_b128 v9, {vr(ACC+4, 4)} offset:3088")
    a("s_waitcnt lgkmcnt(0)")
    a("s_barrier")
    a("v_cmp_gt_u32 vcc, 64, v0")
    a("s_and_saveexec_b64 s[40:41], vcc")
    a(f"s_cbranch_execz {NAME}_done")
    a("v_lshlrev_b32 v9, 2, v0")
    for r in range(32):
        a(f"ds_read_b32 v{16+r}, v9 offset:{3072 + 256*r}")
    a("s_waitcnt lgkmcnt(0)")
    n = 32
    while n > 1:
        n //= 2
        for r in range(n):
            a(f"v_add_f32 v{16+r}, v{16+r}, v{16+r+n}")
    a("v_cvt_pk_bf16_f32 v16, v16, v16")
    a("v_lshlrev_b32 v16, 16, v16")
    m = magic_div(N_MOD, 9)
    a(f"s_mul_i32 s13, s2, {m}")
    a("s_lshr_b32 s13, s13, 16")
    a("s_cmp_eq_u32 s13, 1")
    a("s_cselect_b32 s14, 1, 0")
    a("s_cmp_eq_u32 s13, 4")
    a("s_cselect_b32 s14, 1, s14")
    a("s_cmp_eq_u32 s14, 0")
    a(f"s_cbranch_scc1 {NAME}_mod_store")
    a("v_add_f32 v16, 1.0, v16")
    a("v_cvt_pk_bf16_f32 v16, v16, v16")
    a("v_lshlrev_b32 v16, 16, v16")
    a(f"{NAME}_mod_store:")
    a("s_lshl_b32 s12, s2, 8")
    a("buffer_store_dword v16, v9, s[28:31], s12 offen")
```

```python
from common import *

NAME = "red_kernel"
GRID = 288


def gen():
    a = Asm()
    kernel_begin(a, NAME)
    a(f"s_cmp_ge_u32 s2, {GRID}")
    a(f"s_cbranch_scc1 {NAME}_done")
    load_ptr(a, 4, "out"); load_ptr(a, 6, "ws")
    wave_id(a, 12, 1)
    m9 = magic_div(GRID, 9)
    a(f"s_mul_i32 s13, s2, {m9}")
    a("s_lshr_b32 s13, s13, 16")
    a("s_mul_i32 s14, s13, 9")
    a("s_sub_u32 s14, s2, s14")
    a("v_and_b32 v1, 63, v0")
    a("v_lshlrev_b32 v2, 4, v1")
    a("v_and_b32 v3, 15, v1")
    a("v_lshrrev_b32 v4, 4, v1")
    a("s_waitcnt lgkmcnt(0)")
    make_srd(a, 16, 4, TD_BYTES)
    make_srd(a, 20, 6, PART_BYTES, add=WS_PART)
    make_srd(a, 24, 6, TD_BYTES, add=WS_X1)
    make_srd(a, 28, 6, 6 * D * 4, add=WS_MOD)
    a("s_lshl_b32 s15, s2, 2")
    a("s_add_u32 s15, s15, s12")
    a("s_lshl_b32 s15, s15, 11")
    P = 16
    for x in range(8):
        for tp in range(2):
            a(f"buffer_load_dwordx4 {vr(P + 8*x + 4*tp, 4)}, v2, s[20:23], s15 offen offset:{1024*tp}")
        if x < 7:
            a(f"s_add_u32 s15, s15, {TD_BYTES}")
    a("s_lshl_b32 s32, s14, 6")
    a("s_lshl_b32 s33, s12, 4")
    a("s_add_u32 s32, s32, s33")
    a("v_mul_u32_u24 v5, 1152, v3")
    a("v_lshl_add_u32 v5, v4, 3, v5")
    a(f"s_mul_i32 s34, s13, {64*1152}")
    a("s_lshl_b32 s35, s32, 1")
    a("s_add_u32 s34, s34, s35")
    X = 80
    for tt in range(4):
        a(f"s_add_u32 s{36+tt}, s34, {tt*16*1152}")
    for tt in range(4):
        a(f"buffer_load_dwordx2 {vr(X+2*tt, 2)}, v5, s[24:27], s{36+tt} offen")
    a("v_lshlrev_b32 v6, 4, v4")
    a("s_lshl_b32 s40, s32, 2")
    a(f"s_add_u32 s40, s40, {5*D*4}")
    G = 88
    a(f"buffer_load_dwordx4 {vr(G, 4)}, v6, s[28:31], s40 offen")
    ACC, T = 92, 108
    for x in range(8):
        a(f"s_waitcnt vmcnt({5 + 2*(7-x)})")
        for k in range(8):
            src = P + 8*x + k
            if x == 0:
                unpack_lo(a, ACC + 2*k, src); unpack_hi(a, ACC + 2*k + 1, src)
            else:
                unpack_lo(a, T, src); unpack_hi(a, T + 1, src)
                a(f"v_add_f32 v{ACC+2*k}, v{ACC+2*k}, v{T}")
                a(f"v_add_f32 v{ACC+2*k+1}, v{ACC+2*k+1}, v{T+1}")
    a("s_waitcnt vmcnt(0)")
    for tt in range(4):
        for i in range(4):
            (unpack_lo if i % 2 == 0 else unpack_hi)(a, T, X + 2*tt + i // 2)
            a(f"v_fma_f32 v{ACC+4*tt+i}, v{ACC+4*tt+i}, v{G+i}, v{T}")
        o = 112 + 2*tt
        a(f"v_cvt_pk_bf16_f32 v{o}, v{ACC+4*tt}, v{ACC+4*tt+1}")
        a(f"v_cvt_pk_bf16_f32 v{o+1}, v{ACC+4*tt+2}, v{ACC+4*tt+3}")
        a(f"buffer_store_dwordx2 {vr(o, 2)}, v5, s[16:19], s{36+tt} offen")
    a(f"{NAME}_done:")
    a("s_endpgm")
    return a
```

```python
import sys
from common import *
import k_pre, k_conv, k_mix, k_ffn, k_red

HEADER = open("adaLN_cond__ssm_conv_h3__glu_gated_swiglu__prompt.s.ref").read().split("; Override launch")[0]


def build(path):
    ks = [(k_pre, 256, 128, None), (k_conv, 256, 192, None), (k_mix, k_mix.BLOCK, 128, None),
          (k_ffn, 256, 512, 256), (k_red, 256, 128, None)]
    a = Asm()
    a(HEADER.rstrip("\n"))
    for k, block, _, _ in ks:
        a(f"; @launch kernel={k.NAME} grid=({k.GRID},1,1) block=({block},1,1) lds={getattr(k, 'LDS', 0)}")
    a('.amdgcn_target "amdgcn-amd-amdhsa--gfx950"')
    for k, *_ in ks:
        a(k.gen().text())
    for k, _, vg, acc in ks:
        kernel_desc(a, k.NAME, vg, acc)
    open(path, "w").write(a.text())


if __name__ == "__main__":
    build(sys.argv[1] if len(sys.argv) > 1 else "full.s")
```

```python
S, D, F = 2048, 576, 4608
TD_BYTES = S * D * 2

KA = dict(q=0, k=8, v=16, shift_k=24, ssm_k=32, ssm_D=40, w1=56, w3=64, w2=72, c=80, w_mod=88,
          out=96, dbg=104, ws=112)

WS_MOD = 0
WS_UT = 0x10000
WS_ZT = WS_UT + TD_BYTES
WS_X1 = WS_ZT + TD_BYTES
WS_H2F = WS_X1 + TD_BYTES
WS_PART = WS_H2F + TD_BYTES
PART_BYTES = 8 * TD_BYTES
W_BYTES = D * F * 2
WS_WG = WS_PART + PART_BYTES
WS_WU = WS_WG + W_BYTES
WS_WD = WS_WU + W_BYTES
WS_FLG = WS_WD + W_BYTES
FLG_BYTES = 12288
FLG_KV = 9216
WS_END = WS_FLG + FLG_BYTES

LOG2E = 1.4426950408889634


def f32hex(x):
    import struct
    return "0x%08x" % struct.unpack("<I", struct.pack("<f", x))[0]


class Asm:
    def __init__(self):
        self.lines = []

    def __call__(self, s=""):
        for l in s.split("\n"):
            self.lines.append(l)

    def extend(self, items):
        for i in items:
            self(i)

    def text(self):
        return "\n".join(self.lines) + "\n"


def vr(b, n=1):
    return f"v{b}" if n == 1 else f"v[{b}:{b+n-1}]"


def ar(b, n=1):
    return f"a{b}" if n == 1 else f"a[{b}:{b+n-1}]"


def sr(b, n=1):
    return f"s{b}" if n == 1 else f"s[{b}:{b+n-1}]"


def kernel_begin(a, name):
    a(".text")
    a(f".globl {name}")
    a(".p2align 8")
    a(f".type {name},@function")
    a(f"{name}:")


def kernel_desc(a, name, vgpr, accum=None, sgpr=102):
    if accum is None:
        accum = (vgpr + 3) // 4 * 4
    a('.section .rodata,"a"')
    a(".p2align 6")
    a(f".amdhsa_kernel {name}")
    a(f"  .amdhsa_next_free_vgpr {vgpr}")
    a(f"  .amdhsa_next_free_sgpr {sgpr}")
    a(f"  .amdhsa_accum_offset {accum}")
    a("  .amdhsa_group_segment_fixed_size 0")
    a("  .amdhsa_kernarg_size 120")
    a("  .amdhsa_user_sgpr_count 2")
    a("  .amdhsa_user_sgpr_kernarg_segment_ptr 1")
    a("  .amdhsa_system_sgpr_workgroup_id_x 1")
    a("  .amdhsa_float_denorm_mode_32 3")
    a(".end_amdhsa_kernel")


def load_ptr(a, sdst, name):
    a(f"s_load_dwordx2 {sr(sdst, 2)}, s[0:1], {KA[name]}")


def make_srd(a, d, base, nbytes, add=0):
    if add >= 0:
        a(f"s_add_u32 s{d}, s{base}, {add}")
        a(f"s_addc_u32 s{d+1}, s{base+1}, 0")
    else:
        a(f"s_sub_u32 s{d}, s{base}, {-add}")
        a(f"s_subb_u32 s{d+1}, s{base+1}, 0")
    a(f"s_and_b32 s{d+1}, s{d+1}, 0xffff")
    a(f"s_mov_b32 s{d+2}, {nbytes}")
    a(f"s_mov_b32 s{d+3}, 0x00020000")


def make_srd_sadd(a, d, base, nbytes, sadd):
    a(f"s_add_u32 s{d}, s{base}, s{sadd}")
    a(f"s_addc_u32 s{d+1}, s{base+1}, 0")
    a(f"s_and_b32 s{d+1}, s{d+1}, 0xffff")
    a(f"s_mov_b32 s{d+2}, {nbytes}")
    a(f"s_mov_b32 s{d+3}, 0x00020000")


def wave_id(a, sdst, vtmp):
    a(f"v_lshrrev_b32 v{vtmp}, 6, v0")
    a("s_nop 0")
    a(f"v_readfirstlane_b32 s{sdst}, v{vtmp}")
    a("s_nop 3")


def unpack_lo(a, dst, src):
    a(f"v_lshlrev_b32 v{dst}, 16, v{src}")


def unpack_hi(a, dst, src):
    a(f"v_and_b32 v{dst}, 0xffff0000, v{src}")


def magic_div(n, d, bits=16):
    m = ((1 << bits) + d - 1) // d
    for x in range(n):
        assert (x * m) >> bits == x // d, (x, m)
    return m


WS_STAMP = 0x4000000


def stamp_begin(a):
    a("s_memrealtime s[98:99]")
    for k in range(6):
        a(f"s_mov_b32 s{86+2*k}, 0")


MARK_INSTR = "s_memrealtime"


def stamp_mark(k):
    return [f"{MARK_INSTR} s[{86+2*k}:{87+2*k}]", "s_waitcnt lgkmcnt(0)"]


def stamp_end(a, name, idx):
    a("s_waitcnt vmcnt(0) lgkmcnt(0)")
    a("s_mov_b64 exec, -1")
    a("s_barrier")
    a("s_memrealtime s[100:101]")
    a("s_load_dwordx2 s[60:61], s[0:1], 112")
    a("s_waitcnt lgkmcnt(0)")
    a(f"s_add_u32 s60, s60, {WS_STAMP + idx * 32768}")
    a("s_addc_u32 s61, s61, 0")
    a("s_and_b32 s61, s61, 0xffff")
    a("s_mov_b32 s62, 32768")
    a("s_mov_b32 s63, 0x00020000")
    a("v_mov_b32 v4, s98")
    a("v_mov_b32 v5, s100")
    for k in range(6):
        a(f"v_mov_b32 v{6+k}, s{86+2*k}")
    a("s_lshl_b32 s64, s2, 5")
    a("v_mov_b32 v2, s64")
    a("v_cmp_eq_u32 vcc, 0, v0")
    a("s_and_saveexec_b64 s[64:65], vcc")
    a(f"s_cbranch_execz {name}_fin")
    a("buffer_store_dwordx4 v[4:7], v2, s[60:63], 0 offen")
    a("buffer_store_dwordx4 v[8:11], v2, s[60:63], 0 offen offset:16")
    a(f"{name}_fin:")
```

```python
from common import *

NAME = "ffn_kernel"
GRID = 256
XOFF = 0
RING = 73728
MODL = RING
ZL = MODL + 16384
REDL = ZL + 12288
RPL = REDL + 512
OWNL = RING
LDS = RPL + 8 * 4096

V_L16, V_H = 4, 5
V_X = (6, 7)
V_PS = (8, 9)
V_OW = (10, 11)
ACC = (16, 48)
TMP, HP = 80, 88
AF = 96
NS = 12
X1P = 192
BV = 224
S_WG, S_WU, S_WD, S_H2, S_P = 8, 12, 16, 20, 24
S_WAVE, S_M, S_X = 28, 29, 30
S_OFF, S_M0X, S_OFF2, S_POFF, S_CNT, S_XOFF, S_NL2E, S_POFF1 = 31, 34, 35, 36, 37, 38, 39, 40
S_T0, S_FOFF, S_WS = 41, 32, 46
S_FPTR, S_FVAL = 56, 58
S_FLG = 52
STORE_FLAGS = "sc1"
NT = "nt"
SPIN_LIMIT = 20000
DIAG = set()
MARKS = {}


def mark(a, name):
    if name in MARKS:
        a(f"; mark {MARKS[name]}")


def diag_filter(lines):
    out = []
    for l in lines:
        op = l.split()[0] if l.split() else ""
        if "novalu" in DIAG and op in ("v_exp_f32", "v_rcp_f32"):
            continue
        if "p2plain" in DIAG and op == "buffer_load_dwordx4" and f"s[{S_WD}:" in l and l.endswith("sc1"):
            l = l[:-4]
        if "nostore" in DIAG and op == "buffer_store_dwordx4" and f"s[{S_P}:" in l:
            l = "s_nop 0"
        if "nods" in DIAG and op == "ds_write_b128":
            l = "s_nop 0"
        if "noperm" in DIAG and op == "v_permlane16_swap_b32" and "v8" in l or ("noperm" in DIAG and op == "v_permlane16_swap_b32" and "v9" in l):
            l = "s_nop 0"
        out.append(l)
    return out


def breg(fi):
    return ar(4 * fi, 4) if fi < 64 else vr(BV + 4 * (fi - 64), 4)


class VM:
    def __init__(self):
        self.q = []

    def issue(self, tag):
        self.q.append(tag)

    def wait_for(self, pred):
        last = -1
        for i, t in enumerate(self.q):
            if pred(t):
                last = i
        n = len(self.q) - 1 - last
        self.q = self.q[last + 1:]
        assert n <= 63
        return n


def merge_bodies(bodies):
    assert len(set(len(b) for b in bodies)) == 1
    out = []
    for ls in zip(*bodies):
        if len(set(ls)) == 1:
            out.append(ls[0])
        else:
            assert all(l.startswith("s_waitcnt vmcnt(") for l in ls), ls
            out.append(f"s_waitcnt vmcnt({min(int(l[16:-1]) for l in ls)})")
    return out


def cost(s):
    if s.endswith(":"):
        return 0
    op = s.split()[0]
    return 8 if op in ("v_exp_f32", "v_rcp_f32") else 4


def emit(a, vm, it):
    if isinstance(it, tuple):
        vm.issue(it[1])
        it = it[0]
    a(it)
    return it


def place(a, vm, mfmas, fixed, queue, budget=8):
    for i, m in enumerate(mfmas):
        a(m)
        used = 0
        for it in fixed.get(i, []):
            used += cost(emit(a, vm, it))
        while queue and used + cost(queue[0]) <= budget:
            it = queue.pop(0)
            a(it); used += cost(it)


def swiglu_items(buf):
    out = []
    for tt in range(4):
        for h in range(2):
            g0 = ACC[buf] + 4 * tt + 2 * h
            u0 = ACC[buf] + 16 + 4 * tt + 2 * h
            t0, t1, p0, p1 = (TMP + 4 * h + i for i in range(4))
            out += [f"v_mul_f32 v{t0}, s{S_NL2E}, v{g0}",
                    f"v_mul_f32 v{t1}, s{S_NL2E}, v{g0+1}",
                    f"v_exp_f32 v{t0}, v{t0}",
                    f"v_exp_f32 v{t1}, v{t1}",
                    f"v_mul_f32 v{p0}, v{g0}, v{u0}",
                    f"v_mul_f32 v{p1}, v{g0+1}, v{u0+1}",
                    f"v_add_f32 v{t0}, 1.0, v{t0}",
                    f"v_add_f32 v{t1}, 1.0, v{t1}",
                    f"v_rcp_f32 v{t0}, v{t0}",
                    f"v_rcp_f32 v{t1}, v{t1}",
                    f"v_mul_f32 v{p0}, v{p0}, v{t0}",
                    f"v_mul_f32 v{p1}, v{p1}, v{t1}",
                    f"v_cvt_pk_bf16_f32 v{HP + 2*tt + h}, v{p0}, v{p1}"]
        out.append(f"ds_write_b64 v{V_H}, {vr(HP + 2*tt, 2)} offset:{1024*tt}")
    out.append(f"v_add_u32 v{V_H}, 0x2000, v{V_H}")
    return out


def xread(fi):
    base, off = (V_X[0], fi * 1024) if fi < 64 else (V_X[1], (fi - 64) * 1024)
    return f"ds_read_b128 {breg(fi)}, v{base} offset:{off}"


def load_w13(c, u):
    r = AF + 8 * ((18 * c + u) % NS)
    tag = ("W", c + u // 18, u % 18)
    return [(f"buffer_load_dwordx4 {vr(r, 4)}, v{V_L16}, s[{S_WG}:{S_WG+3}], s{S_OFF} offen", tag),
            (f"buffer_load_dwordx4 {vr(r+4, 4)}, v{V_L16}, s[{S_WU}:{S_WU+3}], s{S_OFF} offen", tag),
            f"s_add_u32 s{S_OFF}, s{S_OFF}, 1024"]


def dma_x(ks):
    return [f"s_add_u32 m0, s{S_M0X}, {ks * 4096}",
            f"s_add_u32 s{S_XOFF}, s{S_XOFF}, 4096" if ks else "s_nop 0",
            (f"buffer_load_dwordx4 v{V_L16}, s[{S_H2}:{S_H2+3}], s{S_XOFF} offen sc1 lds", ("X", ks))]


N2 = 36
P2_EXTRA = [AF + 8 * s + 4 * h for s in (3, 4, 5) for h in range(2)] + \
           [ACC[0] + 16 + 4 * i for i in range(4)] + [ACC[1] + 16 + 4 * i for i in range(4)] + \
           [TMP, TMP + 4, 204, 208]


def p2_slot(u):
    v = u % N2
    if v < 18:
        first = (18 * 8 + 18 - (NS - 1) - 1) % NS
        return AF + 8 * ((first + v // 2) % NS) + 4 * (v % 2)
    return P2_EXTRA[v - 18]


assert len(set(p2_slot(u) for u in range(N2))) == N2


def load_w2(u):
    return [(f"buffer_load_dwordx4 {vr(p2_slot(u), 4)}, v{V_L16}, s[{S_WD}:{S_WD+3}], s{S_OFF2} offen sc1", ("V", u)),
            f"s_add_u32 s{S_OFF2}, s{S_OFF2}, 1024"]


def p1_chunk(vm, c, last=False):
    a = Asm()
    buf = c % 2
    q = swiglu_items(1 - buf) if c > 0 else []
    for j in range(18):
        fixed = {}
        if c == 0:
            a("s_waitcnt lgkmcnt(0)")
            if j % 2 == 0:
                n = vm.wait_for(lambda t: (t[0] == "X" and t[1] <= j + 2) or (t[0] == "W" and (t[1], t[2]) <= (0, j)))
                a(f"s_waitcnt vmcnt({n})")
                a("s_barrier")
            else:
                n = vm.wait_for(lambda t: t[0] == "W" and (t[1], t[2]) <= (0, j))
                a(f"s_waitcnt vmcnt({n})")
            if j + 1 < 18:
                xr = [xread(4 * (j + 1) + tt) for tt in range(4)]
                fixed.setdefault(0, []).extend(xr[:2]); fixed.setdefault(2, []).extend(xr[2:])
        else:
            n = vm.wait_for(lambda t: t[0] == "W" and (t[1], t[2]) <= (c, j))
            a(f"s_waitcnt vmcnt({n})")
        j0 = 18 - (NS - 1)
        if last and j >= j0:
            for k in range(2):
                v = 2 * (j - j0) + k
                if v < 18:
                    fixed.setdefault(1 + 4 * k, []).extend(load_w2(v))
        else:
            l = load_w13(c, j + NS - 1)
            fixed.setdefault(1, []).append(l[0]); fixed.setdefault(5, []).extend(l[1:])
        if c == 0 and j + 8 < 18:
            fixed.setdefault(3, []).extend(dma_x(j + 8))
        if c % 2 == 1 and j == 2:
            fixed.setdefault(3, []).extend(slice_count_prefetch())
        mf = []
        s = AF + 8 * ((18 * c + j) % NS)
        for g in range(2):
            for tt in range(4):
                acc = vr(ACC[buf] + 16 * g + 4 * tt, 4)
                src = acc if j else "0"
                mf.append(f"v_mfma_f32_16x16x32_bf16 {acc}, {vr(s + 4*g, 4)}, {breg(4*j + tt)}, {src}")
        place(a, vm, mf, fixed, q if j >= 1 else [])
    for it in q:
        a(it)
    if c == 0:
        a("s_barrier")
    return a


def store_items(buf, nops=False):
    out = []
    for tp in range(2):
        h = HP + 4 * tp
        for k in range(2):
            c0 = ACC[buf] + 4 * (2 * tp + k)
            out.append(f"v_cvt_pk_bf16_f32 v{h + 2*k}, v{c0}, v{c0+1}")
            out.append(f"v_cvt_pk_bf16_f32 v{h + 2*k + 1}, v{c0+2}, v{c0+3}")
        if nops:
            out.append("s_nop 1")
        out.append(f"v_permlane16_swap_b32 v{h}, v{h+2}")
        out.append(f"v_permlane16_swap_b32 v{h+1}, v{h+3}")
        so = S_POFF if tp == 0 else S_POFF1
        out.append((f"buffer_store_dwordx4 {vr(h, 4)}, v{V_PS[tp]}, s[{S_P}:{S_P+3}], s{so} offen {STORE_FLAGS}", ("S",)))
        out.append(f"ds_write_b128 v{V_OW[tp]}, {vr(h, 4)}")
        out.append(f"s_add_u32 s{so}, s{so}, 1024")
        out.append(f"v_add_u32 v{V_OW[tp]}, 0x400, v{V_OW[tp]}")
    return out


def p2_chunk(vm, c):
    a = Asm()
    buf = c % 2
    st = store_items(1 - buf) if c > 0 else []
    for j in range(18):
        g = 18 * c + j
        if c == 0:
            a(f"s_waitcnt lgkmcnt({4 if j + 1 < 18 else 0})")
        n = vm.wait_for(lambda t: t[0] == "V" and t[1] <= g)
        a(f"s_waitcnt vmcnt({n})")
        fixed = {}
        if c == 0 and j + 2 < 18:
            xr = [xread(4 * (j + 2) + tt) for tt in range(4)]
            fixed.setdefault(0, []).extend(xr[:2]); fixed.setdefault(2, []).extend(xr[2:])
        if c == 0:
            units = [18 + 2 * j, 19 + 2 * j] if j < 17 else [52]
            for k, u in enumerate(units):
                fixed.setdefault(1 + 2 * k, []).extend(load_w2(u))
        elif g + N2 - 1 < 162:
            fixed.setdefault(1, []).extend(load_w2(g + N2 - 1))
        if st and j >= 1:
            fixed.setdefault(3, []).append(st.pop(0))
            if st and j in (9, 17, 1, 10):
                fixed.setdefault(2, []).append(fixed[3].pop())
                fixed[3].append(st.pop(0))
        mf = []
        s = p2_slot(g)
        for tt in range(4):
            acc = vr(ACC[buf] + 4 * tt, 4)
            src = acc if j else "0"
            mf.append(f"v_mfma_f32_16x16x32_bf16 {acc}, {vr(s, 4)}, {breg(4*j + tt)}, {src}")
        place(a, vm, mf, fixed, [])
    assert not st
    return a


def wait_flags(a, label, byte_off, column=False):
    a(f"s_cmp_lg_u32 s{S_WAVE}, 0")
    a(f"s_cbranch_scc1 {label}_ok")
    a(f"s_mov_b32 s48, {SPIN_LIMIT}")
    if column:
        a(f"s_lshl_b32 s49, s{S_X}, 2")
        a("v_lshlrev_b32 v12, 7, v1")
        lanes = 32
    else:
        a(f"s_lshl_b32 s49, s{S_M}, 7")
        a("v_lshlrev_b32 v12, 2, v1")
        lanes = 8
    a(f"s_add_u32 s49, s49, {byte_off}")
    a("v_mov_b32 v13, 0x7f000000")
    a(f"v_cmp_gt_u32 vcc, {lanes}, v1")
    a("s_nop 1")
    a("v_cndmask_b32 v12, v13, v12, vcc")
    a(f"s_mov_b32 s50, {hex((1 << lanes) - 1)}")
    a("s_mov_b32 s51, 0")
    a(f"{label}_poll:")
    a(f"buffer_load_dword v13, v12, s[{S_FLG}:{S_FLG+3}], s49 offen sc1")
    a("s_waitcnt vmcnt(0)")
    a("v_cmp_eq_u32 vcc, 1, v13")
    a("s_nop 3")
    a("s_cmp_eq_u64 vcc, s[50:51]")
    a(f"s_cbranch_scc1 {label}_ok")
    a("s_sub_u32 s48, s48, 1")
    a("s_cmp_eq_u32 s48, 0")
    a(f"s_cbranch_scc1 {label}_ok")
    a("s_sleep 2")
    a(f"s_branch {label}_poll")
    a(f"{label}_ok:")
    a("s_barrier")


def count_slice(a):
    label = NAME + "_c3"
    a(f"s_cmp_lg_u32 s{S_WAVE}, 0")
    a(f"s_cbranch_scc1 {label}")
    a("v_mov_b32 v14, 0")
    a("v_mov_b32 v15, 1")
    a("s_mov_b64 s[50:51], exec")
    a("s_mov_b64 exec, 1")
    a(f"buffer_atomic_add v15, v14, s[{S_FLG}:{S_FLG+3}], s{S_FOFF} offen")
    a("s_mov_b64 exec, s[50:51]")
    a(f"{label}:")


def slice_count_prefetch():
    label = NAME + "_p3"
    return [f"s_cmp_eq_u32 s{S_CNT}, 1",
            f"s_cbranch_scc0 {label}",
            f"s_load_dword s{S_FVAL}, s[{S_FPTR}:{S_FPTR+1}], 0",
            f"{label}:"]


def check_slice_count(a):
    label = NAME + "_w3"
    a("s_waitcnt lgkmcnt(0)")
    a(f"s_cmp_eq_u32 s{S_FVAL}, 32")
    a(f"s_cbranch_scc1 {label}_ok")
    a(f"s_mov_b32 s48, {SPIN_LIMIT}")
    a("v_mov_b32 v14, 0")
    a(f"{label}_poll:")
    a(f"buffer_load_dword v15, v14, s[{S_FLG}:{S_FLG+3}], s{S_FOFF} offen sc1")
    a("s_waitcnt vmcnt(0)")
    a("v_readfirstlane_b32 s49, v15")
    a("s_nop 3")
    a("s_cmp_eq_u32 s49, 32")
    a(f"s_cbranch_scc1 {label}_ok")
    a("s_sub_u32 s48, s48, 1")
    a("s_cmp_eq_u32 s48, 0")
    a(f"s_cbranch_scc1 {label}_ok")
    a("s_sleep 2")
    a(f"s_branch {label}_poll")
    a(f"{label}_ok:")


def set_flag(a, label, byte_off):
    a(f"s_cmp_lg_u32 s{S_WAVE}, 0")
    a(f"s_cbranch_scc1 {label}_set")
    a(f"s_lshl_b32 s49, s{S_M}, 7")
    a(f"s_lshl_b32 s48, s{S_X}, 2")
    a("s_add_u32 s49, s49, s48")
    a(f"s_add_u32 s49, s49, {byte_off}")
    a("v_mov_b32 v14, 0")
    a("v_mov_b32 v15, 1")
    a("s_mov_b64 s[50:51], exec")
    a("s_mov_b64 exec, 1")
    a(f"buffer_store_dword v15, v14, s[{S_FLG}:{S_FLG+3}], s49 offen sc1")
    a("s_mov_b64 exec, s[50:51]")
    a(f"{label}_set:")


def group_sum(a, regs, tmp):
    for r in regs:
        a("s_nop 1")
        a(f"v_add_f32_dpp v{r}, v{r}, v{r} row_ror:8 row_mask:0xf bank_mask:0xf")
        a(f"v_mov_b32 v{tmp}, v{r}")
        a("s_nop 1")
        a(f"v_permlane16_swap_b32 v{tmp}, v{r}")
        a("s_nop 1")
        a(f"v_add_f32 v{r}, v{r}, v{tmp}")
        a(f"v_mov_b32 v{tmp}, v{r}")
        a("s_nop 1")
        a(f"v_permlane32_swap_b32 v{tmp}, v{r}")
        a("s_nop 1")
        a(f"v_add_f32 v{r}, v{r}, v{tmp}")


def ln_stats(a, rnd, s, tmp, vwr, vrd, mean, rstd):
    group_sum(a, [s, s + 1], tmp)
    base = rnd * 256
    a(f"ds_write_b64 v{vwr}, {vr(s, 2)} offset:{base}")
    a("s_waitcnt lgkmcnt(0)")
    a("s_barrier")
    for w in range(4):
        a(f"ds_read_b64 {vr(tmp + 2*w, 2)}, v{vrd} offset:{base + 64*w}")
    a("s_waitcnt lgkmcnt(0)")
    for w in range(1, 4):
        a(f"v_add_f32 v{tmp}, v{tmp}, v{tmp+2*w}")
        a(f"v_add_f32 v{tmp+1}, v{tmp+1}, v{tmp+2*w+1}")
    inv = f32hex(1.0 / D)
    a(f"v_mul_f32 v{mean}, {inv}, v{tmp}")
    a(f"v_mul_f32 v{tmp+1}, {inv}, v{tmp+1}")
    a(f"v_fma_f32 v{tmp+1}, -v{mean}, v{mean}, v{tmp+1}")
    a(f"v_max_f32 v{tmp+1}, 0, v{tmp+1}")
    a(f"v_add_f32 v{tmp+1}, {f32hex(1e-5)}, v{tmp+1}")
    a(f"v_rsq_f32 v{rstd}, v{tmp+1}")
    a("s_nop 0")
    a(f"v_mul_f32 v{mean}, v{mean}, v{rstd}")


def pair_stats(a, base, s, tmp):
    a(f"v_pk_add_f32 {vr(tmp, 2)}, {vr(base, 2)}, {vr(base + 2, 2)}")
    a(f"v_pk_mul_f32 {vr(tmp + 2, 2)}, {vr(base, 2)}, {vr(base, 2)}")
    a(f"v_pk_fma_f32 {vr(tmp + 2, 2)}, {vr(base + 2, 2)}, {vr(base + 2, 2)}, {vr(tmp + 2, 2)}")
    for e in range(4, 24, 2):
        a(f"v_pk_add_f32 {vr(tmp, 2)}, {vr(tmp, 2)}, {vr(base + e, 2)}")
        a(f"v_pk_fma_f32 {vr(tmp + 2, 2)}, {vr(base + e, 2)}, {vr(base + e, 2)}, {vr(tmp + 2, 2)}")
    a(f"v_add_f32 v{s}, v{tmp}, v{tmp+1}")
    a(f"v_add_f32 v{s+1}, v{tmp+2}, v{tmp+3}")


def normalize(h, x, mean, rstd):
    return (f"v_pk_fma_f32 {vr(h, 2)}, {vr(x, 2)}, {vr(rstd, 2)}, {vr(mean, 2)} "
            "op_sel_hi:[1,0,0] neg_lo:[0,0,1] neg_hi:[0,0,1]")


def row_offsets(a, sdst, base_expr_sgpr, stride):
    for it in range(3):
        a(f"s_add_u32 s48, s{S_WAVE}, {4*it}")
        a(f"s_mul_i32 s{sdst+it}, s48, {stride}")
        a(f"s_add_u32 s{sdst+it}, s{sdst+it}, s{base_expr_sgpr}")
        a("s_cmp_lt_u32 s48, 9")
        a(f"s_cselect_b32 s{sdst+it}, s{sdst+it}, 0x70000000")


def mix_prologue(a, vm):
    SQ, SZ, SM = 60, 64, 68
    a("v_and_b32 v2, 7, v1")
    a("v_lshrrev_b32 v3, 3, v1")
    make_srd(a, SQ, 42, TD_BYTES)
    make_srd(a, SZ, S_WS, TD_BYTES, add=WS_ZT)
    make_srd(a, SM, S_WS, 6 * D * 4, add=WS_MOD)
    V_Q, V_Z, V_ZR, V_P, V_HS, V_RW, V_RR = 204, 205, 206, 207, 208, 209, 210
    a(f"v_mul_u32_u24 v{V_Q}, 1152, v2")
    a(f"v_lshl_add_u32 v{V_Q}, v3, 4, v{V_Q}")
    a(f"s_mul_i32 s49, s{S_T0}, 1152")
    row_offsets(a, 72, 49, 128)
    Q = 16
    for it in range(3):
        emit(a, vm, (f"buffer_load_dwordx4 {vr(Q + 4*it, 4)}, v{V_Q}, s[{SQ}:{SQ+3}], s{72+it} offen {NT}", ("Q",)))
    a(f"v_lshlrev_b32 v{V_Z}, 12, v1")
    a(f"s_mul_i32 s48, s{S_WAVE}, 3072")
    a(f"s_add_u32 s75, s48, {ZL}")
    a(f"s_lshl_b32 s49, s{S_T0}, 1")
    a(f"s_lshl_b32 s48, s{S_WAVE}, 18")
    a("s_add_u32 s49, s49, s48")
    for it in range(3):
        a(f"s_add_u32 m0, s75, {1024*it}")
        a(f"s_add_u32 s48, s49, {it * 4 * 64 * 4096}")
        emit(a, vm, (f"buffer_load_dwordx4 v{V_Z}, s[{SZ}:{SZ+3}], s48 offen lds", ("Q",)))
    a(f"s_lshl_b32 s48, s{S_WAVE}, 12")
    a(f"s_add_u32 m0, s48, {MODL}")
    a("s_nop 0")
    for k in range(4):
        emit(a, vm, (f"buffer_load_dwordx4 v{V_L16}, s[{SM}:{SM+3}], s48 offen offset:{1024*k} lds", ("Q",)))
    SR, SD = 56, 16
    make_srd(a, SR, 44, W_BYTES)
    a("v_lshrrev_b32 v12, 3, v1")
    a("v_mul_u32_u24 v12, 1152, v12")
    a("v_and_b32 v13, 7, v1")
    a("v_lshl_add_u32 v218, v13, 4, v12")
    a(f"s_lshl_b32 s83, s{S_WAVE}, 13")
    a(f"s_add_u32 s83, s83, {RPL}")
    m18 = magic_div(256, 18)
    for n in range(2):
        a(f"s_lshl_b32 s48, s{S_M}, 2")
        a(f"s_add_u32 s48, s48, s{S_WAVE}")
        a(f"s_add_u32 s48, s48, {128*n}")
        a(f"s_mul_i32 s49, s48, {m18}")
        a("s_lshr_b32 s49, s49, 16")
        a("s_mul_i32 s50, s49, 18")
        a("s_sub_u32 s50, s48, s50")
        a(f"s_mul_i32 s50, s50, {32 * 1152}")
        a("s_lshl_b32 s49, s49, 7")
        a("s_add_u32 s50, s50, s49")
        a(f"s_mul_i32 s49, s{S_X}, {576 * 1152}")
        a("s_add_u32 s50, s50, s49")
        a(f"s_mul_i32 s49, s{S_X}, {4 * 162}")
        a("s_add_u32 s49, s49, s48")
        a(f"s_lshl_b32 s{84+n}, s49, 10")
        a("s_cmp_lt_u32 s48, 162")
        a("s_cselect_b32 s50, s50, 0x70000000")
        a(f"s_cselect_b32 s{84+n}, s{84+n}, 0x70000000")
        for p in range(4):
            a(f"s_add_u32 m0, s83, {n*4096 + p*1024}")
            a(f"s_add_u32 s49, s50, {p * 8 * 1152}")
            emit(a, vm, (f"buffer_load_dwordx4 v218, s[{SR}:{SR+3}], s49 offen {NT} lds", ("R", n)))
    for j in range(NS - 1):
        for it in load_w13(0, j):
            emit(a, vm, it)
    a("v_lshrrev_b32 v12, 4, v1")
    a("v_and_b32 v13, 15, v1")
    a("v_bfe_u32 v14, v13, 1, 1")
    a("v_lshlrev_b32 v14, 3, v14")
    a("v_lshl_add_u32 v14, v12, 4, v14")
    a("v_lshrrev_b32 v15, 2, v13")
    a("v_add_u32 v14, v14, v15")
    a("v_lshlrev_b32 v14, 4, v14")
    a("v_and_b32 v15, 1, v13")
    a("v_lshl_add_u32 v14, v15, 3, v14")
    a(f"v_add_u32 v{V_ZR}, s75, v14")
    a(f"s_lshl_b32 s48, s{S_WAVE}, 8")
    a(f"s_add_u32 s48, s48, {MODL}")
    a(f"v_lshlrev_b32 v{V_P}, 5, v3")
    a(f"v_add_u32 v{V_P}, s48, v{V_P}")
    a("v_lshrrev_b32 v12, 2, v3")
    a("v_lshlrev_b32 v12, 12, v12")
    a("v_and_b32 v13, 3, v3")
    a("v_lshl_add_u32 v12, v13, 8, v12")
    a(f"v_lshl_add_u32 v{V_HS}, v2, 4, v12")
    a(f"v_lshlrev_b32 v{V_RR}, 3, v2")
    a(f"v_add_u32 v{V_RR}, {REDL}, v{V_RR}")
    a(f"s_lshl_b32 s48, s{S_WAVE}, 6")
    a(f"v_add_u32 v{V_RW}, s48, v{V_RR}")
    a(f"s_mul_i32 s49, s{S_M}, {72*1024}")
    a(f"s_lshr_b32 s48, s{S_X}, 1")
    a("s_lshl_b32 s48, s48, 10")
    a("s_add_u32 s49, s49, s48")
    a(f"s_and_b32 s48, s{S_X}, 1")
    a("s_lshl_b32 s48, s48, 7")
    a("s_add_u32 s76, s49, s48")
    row_offsets(a, 77, 76, 8192)
    a("v_lshrrev_b32 v12, 4, v1")
    a("v_and_b32 v13, 15, v1")
    a("v_lshrrev_b32 v14, 2, v13")
    a("v_lshl_add_u32 v14, v12, 2, v14")
    a("v_lshlrev_b32 v14, 7, v14")
    a("v_and_b32 v15, 3, v13")
    a("v_lshl_add_u32 v14, v15, 3, v14")
    a("v_add_u32 v219, s83, v14")
    n = vm.wait_for(lambda t: t[0] == "Q")
    a(f"s_waitcnt vmcnt({n})")
    a("s_barrier")
    mark(a, "loads")
    X, Z, P, H, T = 28, 52, 64, 224, 80
    S0, MEAN, RSTD = 212, 216, 214
    for it in range(3):
        for t in range(2):
            a(f"ds_read_b64_tr_b16 {vr(Z + 4*it + 2*t, 2)}, v{V_ZR} offset:{1024*it + 64*t}")
    for e in range(24):
        (unpack_lo if e % 2 == 0 else unpack_hi)(a, X + e, Q + e // 2)
    pair_stats(a, X, S0, T)
    ln_stats(a, 0, S0, T, V_RW, V_RR, MEAN, RSTD)

    def params(vec, it, dst):
        a(f"ds_read_b128 {vr(dst, 4)}, v{V_P} offset:{2304*vec + 1024*it}")
        a(f"ds_read_b128 {vr(dst+4, 4)}, v{V_P} offset:{2304*vec + 1024*it + 16}")

    G = 16
    for it in range(3):
        params(1, it, P); params(0, it, P + 8); params(2, it, G)
        a("s_waitcnt lgkmcnt(0)")
        for e in range(8):
            (unpack_lo if e % 2 == 0 else unpack_hi)(a, T + e, Z + 4*it + e // 2)
        for e in range(0, 8, 2):
            x, h = X + 8*it + e, H + 8*it + e
            a(normalize(h, x, MEAN, RSTD))
            a(f"v_pk_fma_f32 {vr(h, 2)}, {vr(h, 2)}, {vr(P+e, 2)}, {vr(P+8+e, 2)}")
            a(f"v_pk_mul_f32 {vr(h, 2)}, {vr(h, 2)}, {vr(T+e, 2)}")
            a(f"v_pk_fma_f32 {vr(h, 2)}, {vr(h, 2)}, {vr(G+e, 2)}, {vr(x, 2)}")
    for k in range(12):
        a(f"v_cvt_pk_bf16_f32 v{X1P+k}, v{H+2*k}, v{H+2*k+1}")
    for e in range(24):
        (unpack_lo if e % 2 == 0 else unpack_hi)(a, H + e, X1P + e // 2)
    pair_stats(a, H, S0, T)
    ln_stats(a, 1, S0, T, V_RW, V_RR, MEAN, RSTD)
    for it in range(3):
        params(4, it, P); params(3, it, P + 8)
        a("s_waitcnt lgkmcnt(0)")
        for e in range(0, 8, 2):
            h = H + 8*it + e
            a(normalize(h, h, MEAN, RSTD))
            a(f"v_pk_fma_f32 {vr(h, 2)}, {vr(h, 2)}, {vr(P+e, 2)}, {vr(P+8+e, 2)}")
        o = 28 + 4*it
        for k in range(4):
            a(f"v_cvt_pk_bf16_f32 v{o+k}, v{H+8*it+2*k}, v{H+8*it+2*k+1}")
        emit(a, vm, (f"buffer_store_dwordx4 {vr(o, 4)}, v{V_HS}, s[{S_H2}:{S_H2+3}], s{77+it} offen sc1", ("H",)))
    for n in range(2):
        k = vm.wait_for(lambda t: t[0] == "R" and t[1] <= n)
        a(f"s_waitcnt vmcnt({k})")
        R = 40 + 16 * n
        for w in range(4):
            for t in range(2):
                a(f"ds_read_b64_tr_b16 {vr(R + 4*w + 2*t, 2)}, v219 offset:{n*4096 + t*2048 + 32*w}")
        for w in range(4):
            a(f"s_waitcnt lgkmcnt({2*(3-w)})")
            a(f"s_add_u32 s48, s{84+n}, {w * 162 * 1024}")
            emit(a, vm, (f"buffer_store_dwordx4 {vr(R + 4*w, 4)}, v{V_L16}, s[{S_WD}:{S_WD+3}], s48 offen sc1", ("S",)))
    mark(a, "mixdone")
    n = vm.wait_for(lambda t: t[0] == "H")
    a(f"s_waitcnt vmcnt({n})")
    a("s_barrier")
    set_flag(a, NAME + "_f1", 0)
    mark(a, "flag1")
    wait_flags(a, NAME + "_w1", 0)
    mark(a, "got1")


def reduce_epilogue(a):
    SO, SM = 60, 68
    a("s_waitcnt vmcnt(0) lgkmcnt(0)")
    a("s_barrier")
    mark(a, "drained")
    set_flag(a, NAME + "_f2", 4096)
    load_ptr(a, 42, "out")
    a("v_and_b32 v2, 7, v1")
    a("v_lshrrev_b32 v3, 3, v1")
    V_Q, V_G = 204, 205
    a(f"v_mul_u32_u24 v{V_Q}, 1152, v2")
    a(f"v_lshl_add_u32 v{V_Q}, v3, 4, v{V_Q}")
    a(f"v_lshlrev_b32 v{V_G}, 5, v3")
    G = 16
    a(f"s_mov_b32 s49, {5 * D * 4}")
    row_offsets(a, 77, 49, 256)
    for it in range(3):
        for k in range(2):
            a(f"buffer_load_dwordx4 {vr(G + 8*it + 4*k, 4)}, v{V_G}, s[{SM}:{SM+3}], s{77+it} offen offset:{16*k}")
    a("s_waitcnt lgkmcnt(0)")
    make_srd(a, SO, 42, TD_BYTES)
    wait_flags(a, NAME + "_w2", 4096)
    mark(a, "got2")
    a(f"s_lshl_b32 s48, s{S_M}, 3")
    a(f"s_add_u32 s48, s48, s{S_X}")
    a(f"s_mul_i32 s49, s48, {8 * 9216}")
    row_offsets(a, 80, 49, 1024)
    PB = 96
    for it in range(3):
        for x in range(8):
            a(f"s_cmp_eq_u32 s{S_X}, {x}")
            a(f"s_cselect_b32 s48, 0x70000000, s{80+it}")
            a(f"buffer_load_dwordx4 {vr(PB + 32*it + 4*x, 4)}, v{V_L16}, s[{S_P}:{S_P+3}], s48 offen sc1")
            if x < 7:
                a(f"s_add_u32 s{80+it}, s{80+it}, 9216")
    OW = 64
    a(f"s_lshl_b32 s48, s{S_WAVE}, 10")
    a(f"s_add_u32 s48, s48, {OWNL}")
    a(f"v_add_u32 v206, s48, v{V_L16}")
    for it in range(3):
        a(f"ds_read_b128 {vr(OW + 4*it, 4)}, v206 offset:{4096*it}")
    a("s_waitcnt lgkmcnt(0)")
    A, T = 40, 48
    mark(a, "issued")
    for it in range(3):
        for x in range(8):
            a(f"s_waitcnt vmcnt({(2 - it) * 8 + 7 - x + it})")
            for k in range(4):
                src = PB + 32*it + 4*x + k
                if x == 0:
                    unpack_lo(a, A + 2*k, src); unpack_hi(a, A + 2*k + 1, src)
                else:
                    unpack_lo(a, T, src); unpack_hi(a, T + 1, src)
                    a(f"v_add_f32 v{A+2*k}, v{A+2*k}, v{T}")
                    a(f"v_add_f32 v{A+2*k+1}, v{A+2*k+1}, v{T+1}")
        for k in range(4):
            unpack_lo(a, T, OW + 4*it + k); unpack_hi(a, T + 1, OW + 4*it + k)
            a(f"v_add_f32 v{A+2*k}, v{A+2*k}, v{T}")
            a(f"v_add_f32 v{A+2*k+1}, v{A+2*k+1}, v{T+1}")
        for e in range(8):
            (unpack_lo if e % 2 == 0 else unpack_hi)(a, T, X1P + 4*it + e // 2)
            a(f"v_fma_f32 v{A+e}, v{A+e}, v{G+8*it+e}, v{T}")
        o = 52 + 4*it
        for k in range(4):
            a(f"v_cvt_pk_bf16_f32 v{o+k}, v{A+2*k}, v{A+2*k+1}")
        a(f"buffer_store_dwordx4 {vr(o, 4)}, v{V_Q}, s[{SO}:{SO+3}], s{72+it} offen")


def gen():
    a = Asm()
    kernel_begin(a, NAME)
    a(f"s_cmp_ge_u32 s2, {GRID}")
    a(f"s_cbranch_scc1 {NAME}_done")
    load_ptr(a, S_WS, "ws"); load_ptr(a, 44, "w2"); load_ptr(a, 42, "q")
    wave_id(a, S_WAVE, 1)
    a(f"s_and_b32 s{S_X}, s2, 7")
    a(f"s_lshr_b32 s{S_M}, s2, 3")
    a("v_and_b32 v1, 63, v0")
    a(f"v_lshlrev_b32 v{V_L16}, 4, v1")
    a(f"s_lshr_b32 s48, s{S_M}, 3")
    a("s_lshl_b32 s48, s48, 3")
    a(f"s_add_u32 s48, s48, s{S_X}")
    a("s_lshl_b32 s48, s48, 6")
    a(f"s_and_b32 s49, s{S_M}, 7")
    a("s_lshl_b32 s49, s49, 3")
    a(f"s_add_u32 s{S_T0}, s48, s49")
    a("s_waitcnt lgkmcnt(0)")
    make_srd(a, S_WG, S_WS, W_BYTES, add=WS_WG)
    make_srd(a, S_WU, S_WS, W_BYTES, add=WS_WU)
    make_srd(a, S_WD, S_WS, W_BYTES, add=WS_WD)
    make_srd(a, S_H2, S_WS, TD_BYTES, add=WS_H2F)
    make_srd(a, S_P, S_WS, PART_BYTES, add=WS_PART)
    make_srd(a, S_FLG, S_WS, FLG_BYTES, add=WS_FLG)
    a(f"s_lshl_b32 s48, s{S_X}, 2")
    a(f"s_add_u32 s48, s48, s{S_WAVE}")
    a(f"s_mul_i32 s{S_OFF}, s48, {162 * 1024}")
    a(f"s_mov_b32 s{S_OFF2}, s{S_OFF}")
    vm = VM()
    mix_prologue(a, vm)
    a(f"s_lshl_b32 s49, s{S_WAVE}, 10")
    a(f"s_add_u32 s{S_M0X}, s49, {XOFF}")
    a(f"s_mul_i32 s{S_XOFF}, s{S_M}, {72 * 1024}")
    a(f"s_add_u32 s{S_XOFF}, s{S_XOFF}, s49")
    for j in range(8):
        for it in dma_x(j):
            emit(a, vm, it)
    a(f"s_lshl_b32 s48, s{S_M}, 6")
    a(f"s_add_u32 s48, s48, s{S_X}")
    a(f"s_mul_i32 s{S_POFF}, s48, 9216")
    a(f"s_lshl_b32 s48, s{S_WAVE}, 8")
    a(f"s_add_u32 s{S_POFF}, s{S_POFF}, s48")
    a(f"s_add_u32 s{S_POFF1}, s{S_POFF}, {4 * 73728}")
    a(f"s_mov_b32 s{S_NL2E}, {f32hex(-LOG2E)}")
    a(f"v_add_u32 v{V_X[0]}, {XOFF}, v{V_L16}")
    a(f"v_add_u32 v{V_X[1]}, 0x10000, v{V_X[0]}")
    a(f"s_and_b32 s48, s{S_WAVE}, 1")
    a("s_lshl_b32 s48, s48, 3")
    a(f"s_lshr_b32 s49, s{S_WAVE}, 1")
    a("s_lshl_b32 s49, s49, 12")
    a("s_add_u32 s48, s48, s49")
    a(f"v_add_u32 v{V_H}, s48, v{V_X[0]}")
    a("v_and_b32 v12, 15, v1")
    a("v_lshrrev_b32 v13, 4, v1")
    a("v_lshrrev_b32 v15, 3, v12")
    a("v_and_b32 v16, 1, v13")
    a("v_lshl_add_u32 v15, v16, 1, v15")
    a("v_lshrrev_b32 v14, 1, v13")
    a("v_lshlrev_b32 v14, 7, v14")
    a("v_and_b32 v16, 7, v12")
    a("v_lshl_add_u32 v14, v16, 4, v14")
    a("v_mul_u32_u24 v16, 73728, v15")
    a("v_add_u32 v16, v16, v14")
    a(f"s_lshl_b32 s48, s{S_WAVE}, 8")
    a(f"s_add_u32 s48, s48, {OWNL}")
    a("v_add_u32 v14, s48, v14")
    a("v_mov_b32 v17, 0x7f000000")
    a(f"v_lshlrev_b32 v18, 4, v0")
    a(f"v_add_u32 v18, {OWNL + 9216}, v18")
    for tp in range(2):
        a(f"s_sub_u32 s48, s{S_X}, {4*tp}")
        a("v_cmp_eq_u32 vcc, s48, v15")
        a("s_nop 1")
        a(f"v_cndmask_b32 v{V_PS[tp]}, v16, v17, vcc")
        a(f"v_cndmask_b32 v{V_OW[tp]}, v18, v14, vcc")
    a(f"s_lshl_b32 s{S_FOFF}, s{S_X}, 7")
    a(f"s_add_u32 s{S_FOFF}, s{S_FOFF}, 8192")
    a(f"s_add_u32 s48, s{S_FOFF}, {WS_FLG}")
    a(f"s_add_u32 s{S_FPTR}, s{S_WS}, s48")
    a(f"s_addc_u32 s{S_FPTR+1}, s{S_WS+1}, 0")
    a(f"s_mov_b32 s{S_FVAL}, 0")
    n = vm.wait_for(lambda t: t[0] == "X" and t[1] == 0)
    a(f"s_waitcnt vmcnt({n})")
    a("s_barrier")
    for tt in range(4):
        a(xread(tt))
    mark(a, "p1")
    a.extend(p1_chunk(vm, 0).lines)
    mark(a, "c0")
    assert not any(t[0] == "S" for t in vm.q)
    count_slice(a)
    bodies = [p1_chunk(vm, c).lines for c in range(1, 8)]
    a(f"s_mov_b32 s{S_CNT}, 4")
    a(f"{NAME}_l1:")
    a.extend(merge_bodies(bodies[0::2]))
    a(f"s_sub_u32 s{S_CNT}, s{S_CNT}, 1")
    a(f"s_cmp_eq_u32 s{S_CNT}, 0")
    a(f"s_cbranch_scc1 {NAME}_l1x")
    a.extend(merge_bodies(bodies[1::2]))
    a(f"s_branch {NAME}_l1")
    a(f"{NAME}_l1x:")
    check_slice_count(a)
    a.extend(p1_chunk(vm, 8, last=True).lines)
    mark(a, "p1end")
    a("s_nop 4")
    for it in swiglu_items(0):
        a(it)
    a("s_waitcnt lgkmcnt(0)")
    a("s_barrier")
    for j in range(2):
        for tt in range(4):
            a(xread(4 * j + tt))
    mark(a, "p2")
    a.extend(p2_chunk(vm, 0).lines)
    bodies = [p2_chunk(vm, c).lines for c in range(1, 7)]
    a(f"s_mov_b32 s{S_CNT}, 3")
    a(f"{NAME}_l2:")
    a.extend(merge_bodies(bodies[0::2]))
    a.extend(merge_bodies(bodies[1::2]))
    a(f"s_sub_u32 s{S_CNT}, s{S_CNT}, 1")
    a(f"s_cmp_lg_u32 s{S_CNT}, 0")
    a(f"s_cbranch_scc1 {NAME}_l2")
    a.extend(p2_chunk(vm, 7).lines)
    a.extend(p2_chunk(vm, 8).lines)
    mark(a, "p2end")
    a("s_nop 7")
    for it in store_items(0, nops=True):
        emit(a, vm, it)
    reduce_epilogue(a)
    mark(a, "end")
    a(f"{NAME}_done:")
    a("s_endpgm")
    a.lines = diag_filter(a.lines)
    return a
```

```python
from common import *
from repack import gen_repack_role

NAME = "front_kernel"
N_CONV = 144
N_MOD = 54
N_RP, RP_JOBS = 108, 6
GRID = N_CONV + N_RP
CSTR = 4160
UOFF = 4 * CSTR
WAVE_LDS = UOFF + 4608
KVT = 4 * WAVE_LDS
STG = KVT + 128 * 144
LDS = STG + 64 * 272
OUT_FLAGS = "sc1"
IN_FLAGS = "nt"
SPIN_LIMIT = 20000
GATE = False
POLL_SLEEP = 4


def gen():
    a = Asm()
    kernel_begin(a, NAME)
    a(f"s_cmp_ge_u32 s2, {GRID}")
    a(f"s_cbranch_scc1 {NAME}_done")
    a(f"s_cmp_ge_u32 s2, {N_CONV}")
    a(f"s_cbranch_scc1 {NAME}_bg")
    gen_conv(a)
    a(f"s_branch {NAME}_done")
    a(f"{NAME}_bg:")
    a(f"s_cmp_ge_u32 s2, {N_CONV + N_MOD}")
    a(f"s_cbranch_scc1 {NAME}_rp")
    gen_mod(a)
    a(f"{NAME}_rp:")
    gen_repack_role(a, [("w1", 0, 1296), ("w3", 0, 1296)], N_CONV, N_RP, RP_JOBS, OUT_FLAGS,
                    gate=gate_on_tiles if GATE else None)
    a(f"{NAME}_done:")
    a("s_endpgm")
    return a


def gate_on_tiles(a):
    make_srd(a, 64, 6, 9 * 128, add=WS_FLG + FLG_KV)
    load_ptr(a, 60, "dbg")
    a("s_waitcnt lgkmcnt(0)")
    make_srd(a, 68, 60, 256)
    a("s_cmp_lg_u32 s12, 0")
    a(f"s_cbranch_scc1 {NAME}_gate_ok")
    a(f"s_mov_b32 s62, {SPIN_LIMIT}")
    a("v_mov_b32 v9, 0")
    a(f"{NAME}_gate_init:")
    a("buffer_load_dword v10, v9, s[68:71], 0 offen sc1")
    a("s_waitcnt vmcnt(0)")
    a("v_readfirstlane_b32 s76, v10")
    a("s_nop 3")
    a("s_cmp_eq_u32 s76, 1")
    a(f"s_cbranch_scc1 {NAME}_gate_go")
    a("s_sub_u32 s62, s62, 1")
    a("s_cmp_eq_u32 s62, 0")
    a(f"s_cbranch_scc1 {NAME}_gate_ok")
    a("s_sleep 8")
    a(f"s_branch {NAME}_gate_init")
    a(f"{NAME}_gate_go:")
    a(f"s_mul_i32 s63, s2, {magic_div(256, 9)}")
    a("s_lshr_b32 s63, s63, 16")
    a("s_mul_i32 s63, s63, 9")
    a("s_sub_u32 s63, s2, s63")
    a("s_lshl_b32 s63, s63, 7")
    a("v_lshlrev_b32 v9, 2, v1")
    a("v_mov_b32 v10, 0x7f000000")
    a("v_cmp_gt_u32 vcc, 16, v1")
    a("s_mov_b32 s78, 0xffff")
    a("s_mov_b32 s79, 0")
    a("v_cndmask_b32 v9, v10, v9, vcc")
    a(f"{NAME}_gate_poll:")
    a("buffer_load_dword v10, v9, s[64:67], s63 offen sc1")
    a("s_waitcnt vmcnt(0)")
    a("v_cmp_eq_u32 vcc, 1, v10")
    a("s_nop 3")
    a("s_cmp_eq_u64 vcc, s[78:79]")
    a(f"s_cbranch_scc1 {NAME}_gate_ok")
    a("s_sub_u32 s62, s62, 1")
    a("s_cmp_eq_u32 s62, 0")
    a(f"s_cbranch_scc1 {NAME}_gate_ok")
    a("s_sleep 16")
    a(f"s_branch {NAME}_gate_poll")
    a(f"{NAME}_gate_ok:")
    a("s_barrier")


def kv_tile(a):
    K, V, SK, T, R, PK = 96, 124, 140, 156, 64, 172
    for e in range(8):
        un = unpack_lo if e % 2 == 0 else unpack_hi
        s = [T + i for i in range(4)]
        unpack_lo(a, s[0], SK + 2*e); unpack_hi(a, s[1], SK + 2*e)
        unpack_lo(a, s[2], SK + 2*e + 1); unpack_hi(a, s[3], SK + 2*e + 1)
        kk = [T + 4 + j for j in range(7)]
        for j in range(7):
            un(a, kk[j], K + 4*j + e // 2)
        vv = [T + 11 + i for i in range(4)]
        for i in range(4):
            un(a, vv[i], V + 4*i + e // 2)
        for i in range(4):
            a(f"v_mul_f32 v{R+8*i+e}, v{kk[i]}, v{s[3]}")
        for tap in range(1, 4):
            for i in range(4):
                a(f"v_fmac_f32 v{R+8*i+e}, v{kk[i+tap]}, v{s[3-tap]}")
        for i in range(4):
            a(f"v_mul_f32 v{R+8*i+e}, v{R+8*i+e}, v{vv[i]}")
    for i in range(4):
        for k in range(4):
            a(f"v_cvt_pk_bf16_f32 v{PK+4*i+k}, v{R+8*i+2*k}, v{R+8*i+2*k+1}")
        a(f"ds_write_b128 v52, {vr(PK+4*i, 4)} offset:{144*i}")
    a("s_waitcnt lgkmcnt(0)")
    a("s_barrier")
    for rho in range(4):
        a(f"ds_read_b64_tr_b16 {vr(64+4*rho, 2)}, v53 offset:{rho*32*144 + 4*144}")
        a(f"ds_read_b64_tr_b16 {vr(66+4*rho, 2)}, v53 offset:{rho*32*144}")
    for rho in range(4):
        a(f"s_waitcnt lgkmcnt({2*(3-rho) + rho})")
        a(f"ds_write_b128 v54, {vr(64+4*rho, 4)} offset:{64*rho}")
    a("s_waitcnt lgkmcnt(0)")
    for i in range(4):
        a(f"ds_read_b128 {vr(80+4*i, 4)}, v55 offset:{1088*i}")
    for i in range(4):
        a(f"s_waitcnt lgkmcnt({3-i})")
        a(f"s_add_u32 s47, s46, {i * 4 * 4096}")
        a(f"buffer_store_dwordx4 {vr(80+4*i, 4)}, v96, s[64:67], s47 offen {OUT_FLAGS}")


def gen_conv(a):
    load_ptr(a, 4, "ssm_k"); load_ptr(a, 6, "ws"); load_ptr(a, 8, "ssm_D")
    load_ptr(a, 48, "k"); load_ptr(a, 50, "v"); load_ptr(a, 52, "shift_k"); load_ptr(a, 54, "dbg")
    wave_id(a, 12, 1)
    a("s_lshl_b32 s13, s2, 2")
    a("s_add_u32 s13, s13, s12")
    a("s_lshl_b32 s14, s13, 12")
    a(f"s_mul_i32 s15, s12, {WAVE_LDS}")
    a(f"s_mul_i32 s42, s2, {magic_div(N_CONV, 9)}")
    a("s_lshr_b32 s42, s42, 16")
    a("s_mul_i32 s43, s42, 9")
    a("s_sub_u32 s43, s2, s43")
    a("v_and_b32 v1, 63, v0")
    a("v_lshlrev_b32 v2, 4, v1")
    a("v_and_b32 v3, 7, v0")
    a("v_lshrrev_b32 v4, 3, v0")
    a("s_waitcnt lgkmcnt(0)")
    a("; mark 0")
    make_srd(a, 56, 48, TD_BYTES)
    make_srd(a, 60, 50, TD_BYTES)
    make_srd(a, 68, 52, D * 4 * 2)
    a(f"s_mul_i32 s44, s42, {128 * 1152}")
    a("s_lshl_b32 s45, s43, 7")
    a("s_add_u32 s44, s44, s45")
    a(f"v_mul_u32_u24 v5, {4 * 1152}, v4")
    a("v_lshl_add_u32 v5, v3, 4, v5")
    a("v_add_u32 v8, s44, v5")
    for j in range(7):
        if j < 3:
            a(f"v_subrev_u32 v{5+j}, {(3-j) * 1152}, v8")
        elif j > 3:
            a(f"v_add_u32 v{5+j}, {(j-3) * 1152}, v8")
    K, V, SK = 96, 124, 140
    for j in range(7):
        a(f"buffer_load_dwordx4 {vr(K+4*j, 4)}, v{5+j}, s[56:59], 0 offen {IN_FLAGS}")
    for i in range(4):
        a(f"buffer_load_dwordx4 {vr(V+4*i, 4)}, v{8+i}, s[60:63], 0 offen {IN_FLAGS}")
    a("s_lshl_b32 s45, s43, 9")
    a("v_lshlrev_b32 v12, 6, v3")
    a("v_add_u32 v12, s45, v12")
    for j in range(4):
        a(f"buffer_load_dwordx4 {vr(SK+4*j, 4)}, v12, s[68:71], 0 offen offset:{16*j}")
    make_srd_sadd(a, 16, 4, 4096, 14)
    Dk, Ek, Nk = 16, 32, 48
    for i in range(4):
        a(f"buffer_load_dwordx4 {vr(Dk+4*i, 4)}, v2, s[16:19], 0 offen offset:{1024*i} {IN_FLAGS}")
        a(f"buffer_load_dwordx4 {vr(Ek+4*i, 4)}, v2, s[16:19], 0 offen offset:{1024*i+4} {IN_FLAGS}")
        a(f"buffer_load_dword v{Nk+i}, v2, s[16:19], 0 offen offset:{1024*i+20} {IN_FLAGS}")
    a(f"s_add_u32 s32, s14, {WS_UT}")
    make_srd_sadd(a, 20, 6, 4096, 32)
    a(f"s_add_u32 s32, s14, {WS_ZT}")
    make_srd_sadd(a, 24, 6, 4096, 32)
    make_srd(a, 64, 6, TD_BYTES, add=WS_UT)
    make_srd(a, 72, 54, 256)
    make_srd(a, 80, 6, 9 * 128, add=WS_FLG + FLG_KV)
    a("s_lshl_b32 s33, s13, 1")
    a("s_and_b32 s33, s33, 0xfffffffc")
    a("s_load_dword s34, s[8:9], s33")
    a("v_mul_u32_u24 v52, 576, v4")
    a("v_lshl_add_u32 v52, v3, 4, v52")
    a(f"v_add_u32 v52, {KVT}, v52")
    a("v_lshrrev_b32 v56, 4, v1")
    a("v_and_b32 v57, 15, v1")
    a("v_lshrrev_b32 v58, 2, v57")
    a("v_lshlrev_b32 v53, 3, v56")
    a("v_sub_u32 v53, v53, v58")
    a("v_add_u32 v53, 3, v53")
    a("v_mul_u32_u24 v53, 144, v53")
    a("v_and_b32 v58, 3, v57")
    a("v_lshl_add_u32 v53, v58, 3, v53")
    a("s_lshl_b32 s45, s12, 5")
    a(f"s_add_u32 s45, s45, {KVT}")
    a("v_add_u32 v53, s45, v53")
    a(f"s_mul_i32 s45, s12, {16 * 272}")
    a(f"s_add_u32 s45, s45, {STG}")
    a("v_mul_u32_u24 v54, 272, v57")
    a("v_lshl_add_u32 v54, v56, 4, v54")
    a("v_add_u32 v54, s45, v54")
    a("v_mul_u32_u24 v55, 272, v56")
    a("v_lshl_add_u32 v55, v57, 4, v55")
    a("v_add_u32 v55, s45, v55")
    a("s_lshl_b32 s46, s43, 6")
    a("s_lshl_b32 s47, s12, 4")
    a("s_add_u32 s46, s46, s47")
    a("s_lshl_b32 s46, s46, 12")
    a("s_lshl_b32 s47, s42, 8")
    a("s_add_u32 s46, s46, s47")
    for i in range(4):
        a(f"v_mov_b32 v{60+i}, 0")
    a("v_lshlrev_b32 v3, 3, v1")
    a("v_add_u32 v3, s15, v3")
    a(f"ds_write_b64 v3, v[60:61] offset:{UOFF}")
    a("v_lshrrev_b32 v4, 1, v1")
    a(f"v_mul_u32_u24 v4, {CSTR}, v4")
    a("v_and_b32 v5, 1, v1")
    a("v_lshl_add_u32 v4, v5, 4, v4")
    a("v_add_u32 v4, s15, v4")
    a("v_cmp_gt_u32 vcc, 8, v1")
    a("s_and_saveexec_b64 s[40:41], vcc")
    a("ds_write_b128 v4, v[60:63]")
    a("s_mov_b64 exec, s[40:41]")
    a("s_waitcnt vmcnt(12)")
    a("; mark 1")
    kv_tile_with_address(a)
    a("v_and_b32 v6, 15, v1")
    a("v_lshrrev_b32 v7, 4, v1")
    a("v_lshrrev_b32 v8, 1, v7")
    a("v_and_b32 v9, 1, v7")
    a("v_add_u32 v10, 1, v6")
    a("v_and_b32 v10, 3, v10")
    a(f"v_mul_u32_u24 v10, {CSTR}, v10")
    a("v_add_u32 v11, 9, v6")
    a("v_and_b32 v11, 0xfffffffc, v11")
    a("v_lshl_add_u32 v11, v8, 4, v11")
    a("v_lshlrev_b32 v12, 3, v9")
    a("v_sub_u32 v11, v11, v12")
    a("v_lshl_add_u32 v10, v11, 1, v10")
    a("v_add_u32 v10, s15, v10")
    a("v_lshlrev_b32 v11, 1, v6")
    a("v_add_u32 v11, v11, v9")
    a("v_lshlrev_b32 v12, 1, v8")
    a("v_sub_u32 v11, v11, v12")
    a("v_add_u32 v11, 4, v11")
    a("v_lshlrev_b32 v11, 4, v11")
    a(f"s_add_u32 s35, s15, {UOFF}")
    a("v_add_u32 v11, s35, v11")
    a("v_lshlrev_b32 v13, 5, v6")
    a("v_lshl_add_u32 v14, v7, 3, v13")
    a("v_lshl_add_u32 v13, v8, 4, v13")
    a("v_xor_b32 v12, 1, v9")
    a("v_lshl_add_u32 v13, v12, 3, v13")
    a(f"s_add_u32 s35, s15, {UOFF + 512}")
    a("v_add_u32 v13, s35, v13")
    a("v_add_u32 v15, s15, v2")
    O = 60
    for i in range(4):
        a(f"s_waitcnt vmcnt({3*(3-i) + 4})")
        d, e, n = Dk + 4*i, Ek + 4*i, Nk + i
        a(f"ds_write_b128 v15, {vr(d, 4)} offset:{32 + 1024*i}")
        a(f"v_alignbit_b32 v{O}, v{d+1}, v{d}, 16")
        a(f"v_alignbit_b32 v{O+1}, v{d+2}, v{d+1}, 16")
        a(f"v_alignbit_b32 v{O+2}, v{d+3}, v{d+2}, 16")
        a(f"v_alignbit_b32 v{O+3}, v{e+3}, v{d+3}, 16")
        a(f"ds_write_b128 v15, {vr(e, 4)} offset:{2*CSTR + 32 + 1024*i}")
        a(f"v_alignbit_b32 v{O+4}, v{e+1}, v{e}, 16")
        a(f"v_alignbit_b32 v{O+5}, v{e+2}, v{e+1}, 16")
        a(f"v_alignbit_b32 v{O+6}, v{e+3}, v{e+2}, 16")
        a(f"v_alignbit_b32 v{O+7}, v{n}, v{e+3}, 16")
        a(f"ds_write_b128 v15, {vr(O, 4)} offset:{CSTR + 32 + 1024*i}")
        a(f"ds_write_b128 v15, {vr(O+4, 4)} offset:{3*CSTR + 32 + 1024*i}")
        O = 68 if O == 60 else 60
    a(f"v_lshlrev_b32 v76, 16, v{Dk}")
    a(f"v_alignbit_b32 v77, v{Dk+1}, v{Dk}, 16")
    a("v_mov_b32 v78, s15")
    a("s_mov_b64 s[40:41], exec")
    a("s_mov_b64 exec, 1")
    a(f"ds_write_b32 v78, v76 offset:{CSTR + 28}")
    a(f"ds_write_b32 v78, v{Dk} offset:{2*CSTR + 28}")
    a(f"ds_write_b64 v78, v[76:77] offset:{3*CSTR + 24}")
    a("s_mov_b64 exec, s[40:41]")
    a("s_waitcnt vmcnt(0)")
    a("s_barrier")
    a("; mark 2")
    a("s_cmp_lg_u32 s12, 0")
    a(f"s_cbranch_scc1 {NAME}_got")
    a(f"s_mov_b32 s45, {SPIN_LIMIT}")
    a("v_mov_b32 v56, 0")
    a(f"{NAME}_init:")
    a("buffer_load_dword v57, v56, s[72:75], 0 offen sc1")
    a("s_waitcnt vmcnt(0)")
    a("v_readfirstlane_b32 s76, v57")
    a("s_nop 3")
    a("s_cmp_eq_u32 s76, 1")
    a(f"s_cbranch_scc1 {NAME}_inited")
    a("s_sub_u32 s45, s45, 1")
    a("s_cmp_eq_u32 s45, 0")
    a(f"s_cbranch_scc1 {NAME}_inited")
    a("s_sleep 4")
    a(f"s_branch {NAME}_init")
    a(f"{NAME}_inited:")
    a("s_lshl_b32 s44, s43, 7")
    a("s_lshl_b32 s45, s42, 2")
    a("s_add_u32 s44, s44, s45")
    a("v_mov_b32 v57, 1")
    a("s_mov_b64 s[40:41], exec")
    a("s_mov_b64 exec, 1")
    a("buffer_store_dword v57, v56, s[80:83], s44 offen sc1")
    a("s_mov_b64 exec, s[40:41]")
    a("s_lshr_b32 s44, s2, 4")
    a("s_lshl_b32 s44, s44, 7")
    a(f"s_mov_b32 s45, {SPIN_LIMIT}")
    a("v_lshlrev_b32 v56, 2, v1")
    a("v_mov_b32 v57, 0x7f000000")
    a("v_cmp_gt_u32 vcc, 16, v1")
    a("s_mov_b32 s78, 0xffff")
    a("s_mov_b32 s79, 0")
    a("v_cndmask_b32 v56, v57, v56, vcc")
    a(f"{NAME}_poll:")
    a("buffer_load_dword v57, v56, s[80:83], s44 offen sc1")
    a("s_waitcnt vmcnt(0)")
    a("v_cmp_eq_u32 vcc, 1, v57")
    a("s_nop 3")
    a("s_cmp_eq_u64 vcc, s[78:79]")
    a(f"s_cbranch_scc1 {NAME}_got")
    a("s_sub_u32 s45, s45, 1")
    a("s_cmp_eq_u32 s45, 0")
    a(f"s_cbranch_scc1 {NAME}_got")
    a(f"s_sleep {POLL_SLEEP}")
    a(f"s_branch {NAME}_poll")
    a(f"{NAME}_got:")
    a("s_barrier")
    a("; mark 3")
    a(f"s_add_u32 m0, s15, {UOFF + 512}")
    a("s_nop 0")
    for i in range(4):
        a(f"buffer_load_dwordx4 v2, s[20:23], 0 offen offset:{1024*i} sc1 lds")
    ACC = 16
    for i in range(32):
        a(f"v_mov_b32 v{ACC+i}, 0")
    a("s_waitcnt vmcnt(0) lgkmcnt(0)")
    a("; mark 4")
    a("s_lshl_b32 s36, s34, 16")
    a("s_and_b32 s37, s34, 0xffff0000")
    a("s_bitcmp1_b32 s13, 0")
    a("s_cselect_b32 s36, s37, s36")
    FR = [64, 128]

    def reads(buf, rho):
        out = []
        for b in range(8):
            out.append(f"ds_read_b128 {vr(FR[buf]+32+4*b, 4)}, v11 offset:{64*(8*b - rho) + 448}")
        for aa in range(8):
            out.append(f"ds_read_b64 {vr(FR[buf]+4*aa, 2)}, v10 offset:{64*(8*aa + rho)}")
            out.append(f"ds_read_b64 {vr(FR[buf]+4*aa+2, 2)}, v10 offset:{64*(8*aa + rho) + 8}")
        return out

    for r in reads(0, 0):
        a(r)
    a("s_mov_b32 s38, 4")
    a(f"{NAME}_loop:")
    for buf in range(2):
        nxt = reads(1 - buf, buf + 1)
        a("s_waitcnt lgkmcnt(0)")
        k = 0
        seq = [(aa, j) for aa in range(8) for j in range(aa, 8)]
        for i, (aa, j) in enumerate(seq):
            A = vr(FR[buf] + 4*aa, 4)
            B = vr(FR[buf] + 32 + 4*(j - aa), 4)
            c = vr(ACC + 4*j, 4)
            a(f"v_mfma_f32_16x16x32_bf16 {c}, {A}, {B}, {c}")
            if k < len(nxt):
                a(nxt[k]); k += 1
        assert k == len(nxt)
    a("v_add_u32 v10, 128, v10")
    a("v_subrev_u32 v11, 128, v11")
    a("s_sub_u32 s38, s38, 1")
    a("s_cmp_lg_u32 s38, 0")
    a(f"s_cbranch_scc1 {NAME}_loop")
    KV = 64
    a("s_waitcnt lgkmcnt(0)")
    a("; mark 5")
    for j in range(8):
        a(f"ds_read_b64 {vr(KV+2*j, 2)}, v13 offset:{512*j}")
    a("s_nop 4")
    for j in range(8):
        a(f"s_waitcnt lgkmcnt({7-j})")
        k0, k1 = KV + 2*j, KV + 2*j + 1
        t = 96 + 4*(j % 2)
        unpack_hi(a, t, k1); unpack_lo(a, t+1, k1); unpack_hi(a, t+2, k0); unpack_lo(a, t+3, k0)
        for i in range(4):
            a(f"v_fma_f32 v{t+i}, v{t+i}, s36, v{ACC+4*j+i}")
        o = 104 + 2*j
        a(f"v_cvt_pk_bf16_f32 v{o}, v{t}, v{t+1}")
        a(f"v_cvt_pk_bf16_f32 v{o+1}, v{t+2}, v{t+3}")
        a(f"buffer_store_dwordx2 {vr(o, 2)}, v14, s[24:27], 0 offen offset:{512*j} {OUT_FLAGS}")


def kv_tile_with_address(a):
    b = Asm()
    kv_tile(b)
    for l in b.lines:
        if l.startswith("ds_read_b128 v[80:83]"):
            a("v_lshrrev_b32 v96, 4, v1")
            a("v_lshlrev_b32 v96, 12, v96")
            a("v_and_b32 v97, 15, v1")
            a("v_lshl_add_u32 v96, v97, 4, v96")
        a(l)


def gen_mod(a):
    load_ptr(a, 4, "c"); load_ptr(a, 6, "w_mod"); load_ptr(a, 10, "ws"); load_ptr(a, 72, "dbg")
    a(f"s_sub_u32 s70, s2, {N_CONV}")
    a("v_and_b32 v1, 7, v0")
    a("v_lshrrev_b32 v2, 3, v0")
    a("s_waitcnt lgkmcnt(0)")
    make_srd(a, 16, 4, D * 2)
    make_srd(a, 20, 6, D * 6 * D * 2)
    make_srd(a, 28, 10, 6 * D * 4, add=WS_MOD)
    make_srd(a, 60, 10, FLG_BYTES, add=WS_FLG)
    a("s_cmp_lg_u32 s70, 0")
    a(f"s_cbranch_scc1 {NAME}_noflags")
    a("v_lshlrev_b32 v3, 4, v0")
    for i in range(4):
        a(f"v_mov_b32 v{116+i}, 0")
    a(f"buffer_store_dwordx4 v[116:119], v3, s[60:63], 0 offen {OUT_FLAGS}")
    for i in range(2):
        a("v_add_u32 v3, 0x1000, v3")
        a(f"buffer_store_dwordx4 v[116:119], v3, s[60:63], 0 offen {OUT_FLAGS}")
    a("s_waitcnt vmcnt(0)")
    a("s_barrier")
    make_srd(a, 64, 72, 256)
    a("v_mov_b32 v116, 0")
    a("v_mov_b32 v117, 1")
    a("v_cmp_eq_u32 vcc, 0, v0")
    a("s_and_saveexec_b64 s[40:41], vcc")
    a(f"s_cbranch_execz {NAME}_noinit")
    a("buffer_store_dword v117, v116, s[64:67], 0 offen sc1")
    a("s_waitcnt vmcnt(0)")
    a(f"{NAME}_noinit:")
    a("s_mov_b64 exec, s[40:41]")
    a(f"{NAME}_noflags:")
    a("v_lshlrev_b32 v3, 1, v0")
    for i in range(3):
        a(f"buffer_load_ushort v{4+i}, v3, s[16:19], 0 offen offset:{512*i}")
    a("v_mul_u32_u24 v7, 6912, v2")
    a("v_lshl_add_u32 v7, v1, 4, v7")
    a("s_lshl_b32 s12, s70, 7")
    W = 16
    for j in range(18):
        a(f"buffer_load_dwordx4 {vr(W+4*j, 4)}, v7, s[20:23], s12 offen {IN_FLAGS}")
        if j < 17:
            a(f"s_add_u32 s12, s12, {32*6912}")
    a("s_waitcnt vmcnt(18)")
    a("v_lshlrev_b32 v8, 2, v0")
    for i in range(3):
        a(f"v_lshlrev_b32 v{4+i}, 16, v{4+i}")
        a(f"v_mul_f32 v9, {f32hex(-LOG2E)}, v{4+i}")
        a("v_exp_f32 v9, v9")
        a("s_nop 0")
        a("v_add_f32 v9, 1.0, v9")
        a("v_rcp_f32 v9, v9")
        a("s_nop 0")
        a(f"v_mul_f32 v9, v{4+i}, v9")
        a("v_cvt_pk_bf16_f32 v9, v9, v9")
        a("v_lshlrev_b32 v9, 16, v9")
        a(f"ds_write_b32 v8, v9 offset:{1024*i}")
    a("s_waitcnt lgkmcnt(0)")
    a("s_barrier")
    a("v_lshlrev_b32 v8, 2, v2")
    SV = 88
    for j in range(18):
        a(f"ds_read_b32 v{SV+j}, v8 offset:{128*j}")
    ACC, T = 108, 116
    for e in range(8):
        a(f"v_mov_b32 v{ACC+e}, 0")
    a("s_waitcnt lgkmcnt(0)")
    for j in range(18):
        a(f"s_waitcnt vmcnt({17-j})")
        for i in range(4):
            unpack_lo(a, T, W + 4*j + i); unpack_hi(a, T + 1, W + 4*j + i)
            a(f"v_fmac_f32 v{ACC+2*i}, v{T}, v{SV+j}")
            a(f"v_fmac_f32 v{ACC+2*i+1}, v{T+1}, v{SV+j}")
    a("v_lshlrev_b32 v9, 8, v2")
    a("v_lshl_add_u32 v9, v1, 5, v9")
    a(f"ds_write_b128 v9, {vr(ACC, 4)} offset:3072")
    a(f"ds_write_b128 v9, {vr(ACC+4, 4)} offset:3088")
    a("s_waitcnt lgkmcnt(0)")
    a("s_barrier")
    a("v_cmp_gt_u32 vcc, 64, v0")
    a("s_and_saveexec_b64 s[40:41], vcc")
    a(f"s_cbranch_execz {NAME}_modend")
    a("v_lshlrev_b32 v9, 2, v0")
    for r in range(32):
        a(f"ds_read_b32 v{16+r}, v9 offset:{3072 + 256*r}")
    a("s_waitcnt lgkmcnt(0)")
    n = 32
    while n > 1:
        n //= 2
        for r in range(n):
            a(f"v_add_f32 v{16+r}, v{16+r}, v{16+r+n}")
    a("v_cvt_pk_bf16_f32 v16, v16, v16")
    a("v_lshlrev_b32 v16, 16, v16")
    a(f"s_mul_i32 s13, s70, {magic_div(N_MOD, 9)}")
    a("s_lshr_b32 s13, s13, 16")
    a("s_cmp_eq_u32 s13, 1")
    a("s_cselect_b32 s14, 1, 0")
    a("s_cmp_eq_u32 s13, 4")
    a("s_cselect_b32 s14, 1, s14")
    a("s_cmp_eq_u32 s14, 0")
    a(f"s_cbranch_scc1 {NAME}_mod_store")
    a("v_add_f32 v16, 1.0, v16")
    a("v_cvt_pk_bf16_f32 v16, v16, v16")
    a("v_lshlrev_b32 v16, 16, v16")
    a(f"{NAME}_mod_store:")
    a("s_lshl_b32 s12, s70, 8")
    a(f"buffer_store_dword v16, v9, s[28:31], s12 offen {OUT_FLAGS}")
    a(f"{NAME}_modend:")
    a("s_mov_b64 exec, s[40:41]")
```

```python
from common import *

STORE_FLAGS = "sc1"
LOAD_FLAGS = "nt"
N_JOBS = 1296


class Repack:
    def __init__(self, kind, s_src, s_dst, s_tmp, s_job0, v_src, v_tr, v_l16, v_frag):
        self.kind = kind
        self.s_src, self.s_dst = s_src, s_dst
        self.t = s_tmp
        self.sj = s_job0
        self.flags = STORE_FLAGS
        self.v_src, self.v_tr, self.v_l16, self.R = v_src, v_tr, v_l16, v_frag

    def setup(self, a, s_wptr, s_ws, s_lds, v_lane, vt):
        make_srd(a, self.s_src, s_wptr, W_BYTES)
        make_srd(a, self.s_dst, s_ws, W_BYTES, add={"w1": WS_WG, "w3": WS_WU}[self.kind])
        a(f"v_lshrrev_b32 v{vt}, 3, v{v_lane}")
        a(f"v_mul_u32_u24 v{vt}, 9216, v{vt}")
        a(f"v_and_b32 v{vt+1}, 7, v{v_lane}")
        a(f"v_lshl_add_u32 v{self.v_src}, v{vt+1}, 4, v{vt}")
        a(f"v_and_b32 v{vt}, 15, v{v_lane}")
        a(f"v_lshrrev_b32 v{vt+1}, 4, v{v_lane}")
        a(f"v_lshrrev_b32 v{vt+2}, 2, v{vt}")
        a(f"v_lshl_add_u32 v{vt+2}, v{vt+1}, 3, v{vt+2}")
        a(f"v_lshlrev_b32 v{vt+2}, 7, v{vt+2}")
        a(f"v_and_b32 v{vt}, 3, v{vt}")
        a(f"v_lshl_add_u32 v{vt+2}, v{vt}, 3, v{vt+2}")
        a(f"v_add_u32 v{self.v_tr}, s{s_lds}, v{vt+2}")
        a(f"v_lshlrev_b32 v{self.v_l16}, 4, v{v_lane}")

    def issue(self, a, n, s_job, s_lds):
        t = self.t
        a(f"s_mul_i32 s{t}, s{s_job}, {magic_div(2048, 162, 20)}")
        a(f"s_lshr_b32 s{t}, s{t}, 20")
        a(f"s_mul_i32 s{t+1}, s{t}, 162")
        a(f"s_sub_u32 s{t+1}, s{s_job}, s{t+1}")
        a(f"s_mul_i32 s{self.sj+n}, s{t}, 648")
        a(f"s_add_u32 s{self.sj+n}, s{self.sj+n}, s{t+1}")
        a(f"s_lshl_b32 s{self.sj+n}, s{self.sj+n}, 10")
        a(f"s_mul_i32 s{t}, s{t}, 1152")
        a(f"s_mul_i32 s{t+2}, s{t+1}, {magic_div(256, 18)}")
        a(f"s_lshr_b32 s{t+2}, s{t+2}, 16")
        a(f"s_mul_i32 s{t+3}, s{t+2}, 18")
        a(f"s_sub_u32 s{t+1}, s{t+1}, s{t+3}")
        a(f"s_lshl_b32 s{t+2}, s{t+2}, 7")
        a(f"s_add_u32 s{t}, s{t}, s{t+2}")
        a(f"s_mul_i32 s{t+1}, s{t+1}, {32 * 9216}")
        a(f"s_add_u32 s{t}, s{t}, s{t+1}")
        a(f"s_cmp_lt_u32 s{s_job}, {N_JOBS}")
        a(f"s_cselect_b32 s{t}, s{t}, 0x70000000")
        a(f"s_cselect_b32 s{self.sj+n}, s{self.sj+n}, 0x70000000")
        for p in range(4):
            a(f"s_add_u32 m0, s{s_lds}, {n*4096 + p*1024}")
            a(f"s_add_u32 s{t+1}, s{t}, {p * 8 * 9216}")
            a(f"buffer_load_dwordx4 v{self.v_src}, s[{self.s_src}:{self.s_src+3}], s{t+1} offen {LOAD_FLAGS} lds")

    def finish(self, a, n):
        R = self.R
        for w in range(4):
            for t in range(2):
                a(f"ds_read_b64_tr_b16 {vr(R + 4*w + 2*t, 2)}, v{self.v_tr} offset:{n*4096 + t*512 + 32*w}")
        for w in range(4):
            a(f"s_waitcnt lgkmcnt({2*(3-w)})")
            a(f"s_add_u32 s{self.t}, s{self.sj+n}, {w * 162 * 1024}")
            a(f"buffer_store_dwordx4 {vr(R + 4*w, 4)}, v{self.v_l16}, s[{self.s_dst}:{self.s_dst+3}], s{self.t} offen {self.flags}")


def gen_repack_role(a, kinds, first_wg, n_wg, jobs_per_wave, store_flags=None, gate=None):
    assert len(kinds) <= 2
    load_ptr(a, 4, kinds[0][0]); load_ptr(a, 6, "ws")
    if len(kinds) == 2:
        load_ptr(a, 8, kinds[1][0])
    wave_id(a, 12, 1)
    a(f"s_sub_u32 s13, s2, {first_wg}")
    a("s_lshl_b32 s13, s13, 2")
    a("s_add_u32 s13, s13, s12")
    a("v_and_b32 v1, 63, v0")
    a(f"s_mul_i32 s14, s12, {jobs_per_wave * 4096}")
    a("s_waitcnt lgkmcnt(0)")
    rps = []
    for i, (kind, j0, nj) in enumerate(kinds):
        rp = Repack(kind, s_src=16 + 8*i, s_dst=20 + 8*i, s_tmp=40, s_job0=48, v_src=2, v_tr=3, v_l16=4, v_frag=16)
        rp.flags = STORE_FLAGS if store_flags is None else store_flags
        rp.setup(a, 4 if i == 0 else 8, 6, 14, 1, 8)
        rps.append(rp)
    waves = 4 * n_wg
    plan = []
    for n in range(jobs_per_wave):
        lo, hi = n * waves, (n + 1) * waves
        n0 = kinds[0][2]
        if hi <= n0 or len(kinds) == 1:
            plan.append((0, kinds[0][1] + lo, kinds[0][1] + n0))
        else:
            assert lo >= n0, "a round must not straddle two matrices"
            plan.append((1, kinds[1][1] + lo - n0, kinds[1][1] + kinds[1][2]))
    for n, (i, base, end) in enumerate(plan):
        a(f"s_add_u32 s15, s13, {base}")
        a(f"s_cmp_lt_u32 s15, {end}")
        a(f"s_cselect_b32 s15, s15, {N_JOBS}")
        rps[i].issue(a, n, 15, 14)
    if gate is not None:
        gate(a)
    for n, (i, base, end) in enumerate(plan):
        a(f"s_waitcnt vmcnt({4 * (jobs_per_wave - 1)})")
        rps[i].R = 16 + 16 * (n % 2)
        rps[i].finish(a, n)
```

```python
import sys
from common import *
import k_front, k_ffn

HEADER = open("adaLN_cond__ssm_conv_h3__glu_gated_swiglu__prompt.s.ref").read().split("; Override launch")[0]


def with_stamps(text, name, idx):
    a = Asm(); stamp_begin(a)
    b = Asm(); stamp_end(b, name, idx)
    lines = text.split("\n")
    out = []
    seen_guard = False
    for l in lines:
        if l == f"s_cbranch_scc1 {name}_done" and not seen_guard:
            out.append(f"s_cbranch_scc1 {name}_exit"); out += a.lines; seen_guard = True
        elif l.startswith("; mark "):
            out += stamp_mark(int(l.split()[2]))
        elif l == "s_endpgm":
            out += b.lines; out.append(f"{name}_exit:"); out.append(l)
        else:
            out.append(l)
    return "\n".join(out)


def build(path, stamps=False):
    ks = [(k_front, 256, 192, None), (k_ffn, 256, 512, 256)]
    a = Asm()
    a(HEADER.rstrip("\n"))
    for k, block, _, _ in ks:
        a(f"; @launch kernel={k.NAME} grid=({k.GRID},1,1) block=({block},1,1) lds={getattr(k, 'LDS', 0)}")
    a('.amdgcn_target "amdgcn-amd-amdhsa--gfx950"')
    for i, (k, *_) in enumerate(ks):
        t = k.gen().text()
        a(with_stamps(t, k.NAME, i) if stamps else t)
    for k, _, vg, acc in ks:
        kernel_desc(a, k.NAME, vg, acc)
    open(path, "w").write(a.text())


if __name__ == "__main__":
    import common
    build("full.s")
    sets = {"a": ["loads", "flag1", "p1", "p1end", "p2end", "end"],
            "b": ["loads", "mixdone", "flag1", "got1", "p1", "c0"],
            "c": ["p1end", "p2", "p2end", "drained", "got2", "issued"]}
    for k, names in sets.items():
        k_ffn.MARKS = {n: i for i, n in enumerate(names)}
        for instr, tag in (("s_memrealtime", "st"), ("s_memtime", "cy")):
            common.MARK_INSTR = instr
            build(f"full_{k}_{tag}.s", stamps=True)
    k_ffn.MARKS = {n: i for i, n in enumerate(sets["a"])}
    common.MARK_INSTR = "s_memrealtime"
    for d in sys.argv[1:]:
        if d == "nogate":
            k_front.GATE = False
            build(f"var_{d}_st.s", stamps=True)
            k_front.GATE = True
            continue
        if d.startswith("ps_"):
            old = k_ffn.STORE_FLAGS
            k_ffn.STORE_FLAGS = {"p": "", "nt": "nt", "sc1": "sc1", "s01": "sc0 sc1", "s1n": "sc1 nt"}[d[3:]]
            build(f"var_{d}_st.s", stamps=True)
            k_ffn.STORE_FLAGS = old
            continue
        k_ffn.DIAG = set(d.split("+"))
        k_ffn.MARKS = {n: i for i, n in enumerate(sets["c"])}
        for instr, tag in (("s_memrealtime", "st"), ("s_memtime", "cy")):
            common.MARK_INSTR = instr
            build(f"diag_{d}_{tag}.s", stamps=True)
        k_ffn.DIAG = set()
```

```python
S, D, F = 2048, 576, 4608
TD_BYTES = S * D * 2

KA = dict(q=0, k=8, v=16, shift_k=24, ssm_k=32, ssm_D=40, w1=56, w3=64, w2=72, c=80, w_mod=88,
          out=96, dbg=104, ws=112)

WS_MOD = 0
WS_UT = 0x10000
WS_ZT = WS_UT + TD_BYTES
WS_X1 = WS_ZT + TD_BYTES
WS_H2F = WS_X1 + TD_BYTES
WS_PART = WS_H2F + TD_BYTES
PART_BYTES = 8 * TD_BYTES
W_BYTES = D * F * 2
WS_WG = WS_PART + PART_BYTES
WS_WU = WS_WG + W_BYTES
WS_WD = WS_WU + W_BYTES
WS_FLG = WS_WD + W_BYTES
FLG_BYTES = 12288
FLG_KV = 9216
WS_END = WS_FLG + FLG_BYTES

LOG2E = 1.4426950408889634


def f32hex(x):
    import struct
    return "0x%08x" % struct.unpack("<I", struct.pack("<f", x))[0]


class Asm:
    def __init__(self):
        self.lines = []

    def __call__(self, s=""):
        for l in s.split("\n"):
            self.lines.append(l)

    def extend(self, items):
        for i in items:
            self(i)

    def text(self):
        return "\n".join(self.lines) + "\n"


def vr(b, n=1):
    return f"v{b}" if n == 1 else f"v[{b}:{b+n-1}]"


def ar(b, n=1):
    return f"a{b}" if n == 1 else f"a[{b}:{b+n-1}]"


def sr(b, n=1):
    return f"s{b}" if n == 1 else f"s[{b}:{b+n-1}]"


def kernel_begin(a, name):
    a(".text")
    a(f".globl {name}")
    a(".p2align 8")
    a(f".type {name},@function")
    a(f"{name}:")


def kernel_desc(a, name, vgpr, accum=None, sgpr=102):
    if accum is None:
        accum = (vgpr + 3) // 4 * 4
    a('.section .rodata,"a"')
    a(".p2align 6")
    a(f".amdhsa_kernel {name}")
    a(f"  .amdhsa_next_free_vgpr {vgpr}")
    a(f"  .amdhsa_next_free_sgpr {sgpr}")
    a(f"  .amdhsa_accum_offset {accum}")
    a("  .amdhsa_group_segment_fixed_size 0")
    a("  .amdhsa_kernarg_size 120")
    a("  .amdhsa_user_sgpr_count 2")
    a("  .amdhsa_user_sgpr_kernarg_segment_ptr 1")
    a("  .amdhsa_system_sgpr_workgroup_id_x 1")
    a("  .amdhsa_float_denorm_mode_32 3")
    a(".end_amdhsa_kernel")


def load_ptr(a, sdst, name):
    a(f"s_load_dwordx2 {sr(sdst, 2)}, s[0:1], {KA[name]}")


def make_srd(a, d, base, nbytes, add=0):
    if add >= 0:
        a(f"s_add_u32 s{d}, s{base}, {add}")
        a(f"s_addc_u32 s{d+1}, s{base+1}, 0")
    else:
        a(f"s_sub_u32 s{d}, s{base}, {-add}")
        a(f"s_subb_u32 s{d+1}, s{base+1}, 0")
    a(f"s_and_b32 s{d+1}, s{d+1}, 0xffff")
    a(f"s_mov_b32 s{d+2}, {nbytes}")
    a(f"s_mov_b32 s{d+3}, 0x00020000")


def make_srd_sadd(a, d, base, nbytes, sadd):
    a(f"s_add_u32 s{d}, s{base}, s{sadd}")
    a(f"s_addc_u32 s{d+1}, s{base+1}, 0")
    a(f"s_and_b32 s{d+1}, s{d+1}, 0xffff")
    a(f"s_mov_b32 s{d+2}, {nbytes}")
    a(f"s_mov_b32 s{d+3}, 0x00020000")


def wave_id(a, sdst, vtmp):
    a(f"v_lshrrev_b32 v{vtmp}, 6, v0")
    a("s_nop 0")
    a(f"v_readfirstlane_b32 s{sdst}, v{vtmp}")
    a("s_nop 3")


def unpack_lo(a, dst, src):
    a(f"v_lshlrev_b32 v{dst}, 16, v{src}")


def unpack_hi(a, dst, src):
    a(f"v_and_b32 v{dst}, 0xffff0000, v{src}")


def magic_div(n, d, bits=16):
    m = ((1 << bits) + d - 1) // d
    for x in range(n):
        assert (x * m) >> bits == x // d, (x, m)
    return m


WS_STAMP = 0x4000000


def stamp_begin(a):
    a("s_memrealtime s[98:99]")
    for k in range(6):
        a(f"s_mov_b32 s{86+2*k}, 0")


MARK_INSTR = "s_memrealtime"


def stamp_mark(k):
    return [f"{MARK_INSTR} s[{86+2*k}:{87+2*k}]", "s_waitcnt lgkmcnt(0)"]


def stamp_end(a, name, idx):
    a("s_waitcnt vmcnt(0) lgkmcnt(0)")
    a("s_mov_b64 exec, -1")
    a("s_barrier")
    a("s_memrealtime s[100:101]")
    a("s_load_dwordx2 s[60:61], s[0:1], 112")
    a("s_waitcnt lgkmcnt(0)")
    a(f"s_add_u32 s60, s60, {WS_STAMP + idx * 32768}")
    a("s_addc_u32 s61, s61, 0")
    a("s_and_b32 s61, s61, 0xffff")
    a("s_mov_b32 s62, 32768")
    a("s_mov_b32 s63, 0x00020000")
    a("v_mov_b32 v4, s98")
    a("v_mov_b32 v5, s100")
    for k in range(6):
        a(f"v_mov_b32 v{6+k}, s{86+2*k}")
    a("s_lshl_b32 s64, s2, 5")
    a("v_mov_b32 v2, s64")
    a("v_cmp_eq_u32 vcc, 0, v0")
    a("s_and_saveexec_b64 s[64:65], vcc")
    a(f"s_cbranch_execz {name}_fin")
    a("buffer_store_dwordx4 v[4:7], v2, s[60:63], 0 offen")
    a("buffer_store_dwordx4 v[8:11], v2, s[60:63], 0 offen offset:16")
    a(f"{name}_fin:")


def stamp_to_debug(a, name):
    a("s_cmp_lg_u32 s2, 0")
    a(f"s_cbranch_scc1 {name}_nodbg")
    a("s_load_dwordx2 s[60:61], s[0:1], 104")
    a("s_load_dwordx2 s[66:67], s[0:1], 112")
    a("s_waitcnt lgkmcnt(0)")
    a("s_and_b32 s61, s61, 0xffff")
    a("s_mov_b32 s62, 256")
    a("s_mov_b32 s63, 0x00020000")
    a(f"s_add_u32 s68, s66, {WS_STAMP}")
    a("s_addc_u32 s69, s67, 0")
    a("s_and_b32 s69, s69, 0xffff")
    a("s_mov_b32 s70, 32768")
    a("s_mov_b32 s71, 0x00020000")
    a("v_mov_b32 v2, 0")
    a("buffer_load_dwordx4 v[12:15], v2, s[68:71], 0 offen sc1")
    a("buffer_load_dwordx4 v[16:19], v2, s[68:71], 0 offen offset:16 sc1")
    a("s_waitcnt vmcnt(0)")
    a("v_mov_b32 v4, s98")
    a("v_mov_b32 v5, s100")
    for k in range(6):
        a(f"v_mov_b32 v{6+k}, s{86+2*k}")
    a("v_cmp_eq_u32 vcc, 0, v0")
    a("s_and_saveexec_b64 s[64:65], vcc")
    a(f"s_cbranch_execz {name}_nodbg")
    for i in range(4):
        a(f"buffer_store_dwordx4 v[{4+4*i}:{7+4*i}], v2, s[60:63], 0 offen offset:{16*i}")
    a(f"{name}_nodbg:")
```

```python
from common import *
from repack import gen_repack_role

NAME = "conv_kernel"
N_CONV = 144
N_RP, RP_JOBS = 108, 4
RP_RANGES = [("w1", 864, 432), ("w3", 0, 1296)]
GRID = N_CONV + N_RP
CSTR = 4160
UOFF = 4 * CSTR
WAVE_LDS = UOFF + 4608
LDS = 4 * WAVE_LDS
OUT_FLAGS = "sc1"
RP_FLAGS = "sc1"
IN_FLAGS = "nt"


def gen():
    a = Asm()
    kernel_begin(a, NAME)
    a(f"s_cmp_ge_u32 s2, {GRID}")
    a(f"s_cbranch_scc1 {NAME}_done")
    a(f"s_cmp_ge_u32 s2, {N_CONV}")
    a(f"s_cbranch_scc1 {NAME}_rp")
    load_ptr(a, 4, "ssm_k"); load_ptr(a, 6, "ws"); load_ptr(a, 8, "ssm_D")
    wave_id(a, 12, 1)
    a("s_lshl_b32 s13, s2, 2")
    a("s_add_u32 s13, s13, s12")
    a("s_lshl_b32 s14, s13, 12")
    a(f"s_mul_i32 s15, s12, {WAVE_LDS}")
    a("v_and_b32 v1, 63, v0")
    a("v_lshlrev_b32 v2, 4, v1")
    a("s_waitcnt lgkmcnt(0)")
    a("; mark 0")
    make_srd_sadd(a, 16, 4, 4096, 14)
    a(f"s_add_u32 s32, s14, {WS_UT}")
    make_srd_sadd(a, 20, 6, 4096, 32)
    a(f"s_add_u32 s32, s14, {WS_ZT}")
    make_srd_sadd(a, 24, 6, 4096, 32)
    a("s_lshl_b32 s33, s13, 1")
    a("s_and_b32 s33, s33, 0xfffffffc")
    a("s_load_dword s34, s[8:9], s33")
    a(f"s_add_u32 m0, s15, {UOFF + 512}")
    a("s_nop 0")
    for i in range(4):
        a(f"buffer_load_dwordx4 v2, s[20:23], 0 offen offset:{1024*i} lds")
    Dk, Ek, Nk = 16, 32, 48
    for i in range(4):
        a(f"buffer_load_dwordx4 {vr(Dk+4*i, 4)}, v2, s[16:19], 0 offen offset:{1024*i} {IN_FLAGS}")
        a(f"buffer_load_dwordx4 {vr(Ek+4*i, 4)}, v2, s[16:19], 0 offen offset:{1024*i+4} {IN_FLAGS}")
        a(f"buffer_load_dword v{Nk+i}, v2, s[16:19], 0 offen offset:{1024*i+20} {IN_FLAGS}")
    NBG = 0
    for i in range(4):
        a(f"v_mov_b32 v{56+i}, 0")
    a("v_lshlrev_b32 v3, 3, v1")
    a("v_add_u32 v3, s15, v3")
    a(f"ds_write_b64 v3, v[56:57] offset:{UOFF}")
    a("v_lshrrev_b32 v4, 1, v1")
    a(f"v_mul_u32_u24 v4, {CSTR}, v4")
    a("v_and_b32 v5, 1, v1")
    a("v_lshl_add_u32 v4, v5, 4, v4")
    a("v_add_u32 v4, s15, v4")
    a("v_cmp_gt_u32 vcc, 8, v1")
    a("s_and_saveexec_b64 s[40:41], vcc")
    a("ds_write_b128 v4, v[56:59]")
    a("s_mov_b64 exec, s[40:41]")
    a("v_and_b32 v6, 15, v1")
    a("v_lshrrev_b32 v7, 4, v1")
    a("v_lshrrev_b32 v8, 1, v7")
    a("v_and_b32 v9, 1, v7")
    a("v_add_u32 v10, 1, v6")
    a("v_and_b32 v10, 3, v10")
    a(f"v_mul_u32_u24 v10, {CSTR}, v10")
    a("v_add_u32 v11, 9, v6")
    a("v_and_b32 v11, 0xfffffffc, v11")
    a("v_lshl_add_u32 v11, v8, 4, v11")
    a("v_lshlrev_b32 v12, 3, v9")
    a("v_sub_u32 v11, v11, v12")
    a("v_lshl_add_u32 v10, v11, 1, v10")
    a("v_add_u32 v10, s15, v10")
    a("v_lshlrev_b32 v11, 1, v6")
    a("v_add_u32 v11, v11, v9")
    a("v_lshlrev_b32 v12, 1, v8")
    a("v_sub_u32 v11, v11, v12")
    a("v_add_u32 v11, 4, v11")
    a("v_lshlrev_b32 v11, 4, v11")
    a(f"s_add_u32 s35, s15, {UOFF}")
    a("v_add_u32 v11, s35, v11")
    a("v_lshlrev_b32 v13, 5, v6")
    a("v_lshl_add_u32 v14, v7, 3, v13")
    a("v_lshl_add_u32 v13, v8, 4, v13")
    a("v_xor_b32 v12, 1, v9")
    a("v_lshl_add_u32 v13, v12, 3, v13")
    a(f"s_add_u32 s35, s15, {UOFF + 512}")
    a("v_add_u32 v13, s35, v13")
    a("v_add_u32 v15, s15, v2")
    O = 60
    for i in range(4):
        a(f"s_waitcnt vmcnt({3*(3-i) + NBG})")
        if i == 0:
            a("; mark 1")
        d, e, n = Dk + 4*i, Ek + 4*i, Nk + i
        a(f"ds_write_b128 v15, {vr(d, 4)} offset:{32 + 1024*i}")
        a(f"v_alignbit_b32 v{O}, v{d+1}, v{d}, 16")
        a(f"v_alignbit_b32 v{O+1}, v{d+2}, v{d+1}, 16")
        a(f"v_alignbit_b32 v{O+2}, v{d+3}, v{d+2}, 16")
        a(f"v_alignbit_b32 v{O+3}, v{e+3}, v{d+3}, 16")
        a(f"ds_write_b128 v15, {vr(e, 4)} offset:{2*CSTR + 32 + 1024*i}")
        a(f"v_alignbit_b32 v{O+4}, v{e+1}, v{e}, 16")
        a(f"v_alignbit_b32 v{O+5}, v{e+2}, v{e+1}, 16")
        a(f"v_alignbit_b32 v{O+6}, v{e+3}, v{e+2}, 16")
        a(f"v_alignbit_b32 v{O+7}, v{n}, v{e+3}, 16")
        a(f"ds_write_b128 v15, {vr(O, 4)} offset:{CSTR + 32 + 1024*i}")
        a(f"ds_write_b128 v15, {vr(O+4, 4)} offset:{3*CSTR + 32 + 1024*i}")
        O = 68 if O == 60 else 60
    a(f"v_lshlrev_b32 v76, 16, v{Dk}")
    a(f"v_alignbit_b32 v77, v{Dk+1}, v{Dk}, 16")
    a("v_mov_b32 v78, s15")
    a("s_mov_b64 s[40:41], exec")
    a("s_mov_b64 exec, 1")
    a(f"ds_write_b32 v78, v76 offset:{CSTR + 28}")
    a(f"ds_write_b32 v78, v{Dk} offset:{2*CSTR + 28}")
    a(f"ds_write_b64 v78, v[76:77] offset:{3*CSTR + 24}")
    a("s_mov_b64 exec, s[40:41]")
    ACC = 16
    a(f"s_waitcnt vmcnt({NBG}) lgkmcnt(0)")
    a("; mark 2")
    for i in range(32):
        a(f"v_mov_b32 v{ACC+i}, 0")
    a("s_lshl_b32 s36, s34, 16")
    a("s_and_b32 s37, s34, 0xffff0000")
    a("s_bitcmp1_b32 s13, 0")
    a("s_cselect_b32 s36, s37, s36")
    FR = [64, 128]

    def reads(buf, rho):
        out = []
        for b in range(8):
            out.append((b, f"ds_read_b128 {vr(FR[buf]+32+4*b, 4)}, v11 offset:{64*(8*b - rho) + 448}"))
        ra = []
        for aa in range(8):
            ra.append(f"ds_read_b64 {vr(FR[buf]+4*aa, 2)}, v10 offset:{64*(8*aa + rho)}")
            ra.append(f"ds_read_b64 {vr(FR[buf]+4*aa+2, 2)}, v10 offset:{64*(8*aa + rho) + 8}")
        return [x[1] for x in out] + ra

    for r in reads(0, 0):
        a(r)
    a("s_mov_b32 s38, 4")
    a(f"{NAME}_loop:")
    for buf in range(2):
        nxt = reads(1 - buf, buf + 1)
        a("s_waitcnt lgkmcnt(0)")
        k = 0
        seq = [(aa, j) for aa in range(8) for j in range(aa, 8)]
        for i, (aa, j) in enumerate(seq):
            A = vr(FR[buf] + 4*aa, 4)
            B = vr(FR[buf] + 32 + 4*(j - aa), 4)
            c = vr(ACC + 4*j, 4)
            a(f"v_mfma_f32_16x16x32_bf16 {c}, {A}, {B}, {c}")
            if k < len(nxt):
                a(nxt[k]); k += 1
        assert k == len(nxt)
    a("v_add_u32 v10, 128, v10")
    a("v_subrev_u32 v11, 128, v11")
    a("s_sub_u32 s38, s38, 1")
    a("s_cmp_lg_u32 s38, 0")
    a(f"s_cbranch_scc1 {NAME}_loop")
    KV = 64
    a("s_waitcnt lgkmcnt(0)")
    a("; mark 3")
    for j in range(8):
        a(f"ds_read_b64 {vr(KV+2*j, 2)}, v13 offset:{512*j}")
    a("s_nop 4")
    for j in range(8):
        a(f"s_waitcnt lgkmcnt({7-j})")
        k0, k1 = KV + 2*j, KV + 2*j + 1
        t = 96 + 4*(j % 2)
        unpack_hi(a, t, k1); unpack_lo(a, t+1, k1); unpack_hi(a, t+2, k0); unpack_lo(a, t+3, k0)
        for i in range(4):
            a(f"v_fma_f32 v{t+i}, v{t+i}, s36, v{ACC+4*j+i}")
        o = 104 + 2*j
        a(f"v_cvt_pk_bf16_f32 v{o}, v{t}, v{t+1}")
        a(f"v_cvt_pk_bf16_f32 v{o+1}, v{t+2}, v{t+3}")
        a(f"buffer_store_dwordx2 {vr(o, 2)}, v14, s[24:27], 0 offen offset:{512*j} {OUT_FLAGS}")
    a(f"s_branch {NAME}_done")
    a(f"{NAME}_rp:")
    gen_repack_role(a, RP_RANGES, N_CONV, N_RP, RP_JOBS, RP_FLAGS)
    a(f"{NAME}_done:")
    a("s_endpgm")
    return a
```

```python
from common import *
from repack import gen_repack_role

NAME = "pre_kernel"
N_MOD, N_KV = 54, 288
RP0 = N_MOD + N_KV
N_RP, RP_JOBS = 108, 2
RP_RANGES = [("w1", 0, 864)]
GRID = RP0 + N_RP
LDS = 4 * RP_JOBS * 4096
OUT_FLAGS = "sc1"
RP_FLAGS = "sc1"
IN_FLAGS = "nt"
K_FLAGS = "nt"


def gen():
    a = Asm()
    kernel_begin(a, NAME)
    a(f"s_cmp_ge_u32 s2, {GRID}")
    a(f"s_cbranch_scc1 {NAME}_done")
    a(f"s_cmp_ge_u32 s2, {RP0}")
    a(f"s_cbranch_scc1 {NAME}_rp")
    a(f"s_cmp_lt_u32 s2, {N_MOD}")
    a(f"s_cbranch_scc1 {NAME}_mod")
    gen_kv(a)
    a(f"s_branch {NAME}_done")
    a(f"{NAME}_rp:")
    gen_repack_role(a, RP_RANGES, RP0, N_RP, RP_JOBS, RP_FLAGS)
    a(f"s_branch {NAME}_done")
    a(f"{NAME}_mod:")
    gen_mod(a)
    a(f"{NAME}_done:")
    a("s_endpgm")
    return a


def gen_kv(a):
    load_ptr(a, 4, "k"); load_ptr(a, 6, "v"); load_ptr(a, 8, "shift_k"); load_ptr(a, 10, "ws")
    wave_id(a, 34, 11)
    a(f"s_sub_u32 s12, s2, {N_MOD}")
    m = magic_div(N_KV, 9)
    a(f"s_mul_i32 s13, s12, {m}")
    a("s_lshr_b32 s13, s13, 16")
    a("s_mul_i32 s14, s13, 9")
    a("s_sub_u32 s14, s12, s14")
    a("v_and_b32 v1, 7, v0")
    a("v_lshrrev_b32 v2, 3, v0")
    a("s_waitcnt lgkmcnt(0)")
    a("; mark 0")
    make_srd(a, 16, 4, TD_BYTES)
    make_srd(a, 20, 6, TD_BYTES)
    make_srd(a, 24, 8, D * 4 * 2)
    make_srd(a, 28, 10, TD_BYTES, add=WS_UT)
    a(f"s_mul_i32 s15, s13, {64 * 1152}")
    a("s_lshl_b32 s32, s14, 7")
    a("s_add_u32 s15, s15, s32")
    a(f"v_mul_u32_u24 v3, {2 * 1152}, v2")
    a("v_lshl_add_u32 v3, v1, 4, v3")
    a("v_add_u32 v3, s15, v3")
    K, V, SK = 16, 36, 44
    for j in range(5):
        dt = j - 3
        if dt < 0:
            a(f"v_subrev_u32 v{4+j}, {-dt * 1152}, v3")
        elif dt == 0:
            a(f"v_mov_b32 v{4+j}, v3")
        else:
            a(f"v_add_u32 v{4+j}, {dt * 1152}, v3")
    for j in range(5):
        a(f"buffer_load_dwordx4 {vr(K+4*j, 4)}, v{4+j}, s[16:19], 0 offen {K_FLAGS}")
    a(f"buffer_load_dwordx4 {vr(V, 4)}, v7, s[20:23], 0 offen {IN_FLAGS}")
    a(f"buffer_load_dwordx4 {vr(V+4, 4)}, v8, s[20:23], 0 offen {IN_FLAGS}")
    a("s_lshl_b32 s33, s14, 9")
    a("v_lshlrev_b32 v9, 6, v1")
    a("v_add_u32 v9, s33, v9")
    for j in range(4):
        a(f"buffer_load_dwordx4 {vr(SK+4*j, 4)}, v9, s[24:27], 0 offen offset:{16*j}")
    a("v_mul_u32_u24 v10, 288, v2")
    a("v_lshl_add_u32 v10, v1, 4, v10")
    a("; mark 1")
    a("s_waitcnt vmcnt(0)")
    a("; mark 2")
    T, R0, R1 = 60, 80, 88
    for e in range(8):
        un = unpack_lo if e % 2 == 0 else unpack_hi
        s0, s1, s2, s3 = T, T + 1, T + 2, T + 3
        unpack_lo(a, s0, SK + 2 * e); unpack_hi(a, s1, SK + 2 * e)
        unpack_lo(a, s2, SK + 2 * e + 1); unpack_hi(a, s3, SK + 2 * e + 1)
        kk = [T + 4 + j for j in range(5)]
        for j in range(5):
            un(a, kk[j], K + 4 * j + e // 2)
        v0_, v1_ = T + 9, T + 10
        un(a, v0_, V + e // 2); un(a, v1_, V + 4 + e // 2)
        a(f"v_mul_f32 v{R0+e}, v{kk[0]}, v{s3}")
        a(f"v_mul_f32 v{R1+e}, v{kk[1]}, v{s3}")
        a(f"v_fmac_f32 v{R0+e}, v{kk[1]}, v{s2}")
        a(f"v_fmac_f32 v{R1+e}, v{kk[2]}, v{s2}")
        a(f"v_fmac_f32 v{R0+e}, v{kk[2]}, v{s1}")
        a(f"v_fmac_f32 v{R1+e}, v{kk[3]}, v{s1}")
        a(f"v_fmac_f32 v{R0+e}, v{kk[3]}, v{s0}")
        a(f"v_fmac_f32 v{R1+e}, v{kk[4]}, v{s0}")
        a(f"v_mul_f32 v{R0+e}, v{R0+e}, v{v0_}")
        a(f"v_mul_f32 v{R1+e}, v{R1+e}, v{v1_}")
    for i in range(4):
        a(f"v_cvt_pk_bf16_f32 v{96+i}, v{R0+2*i}, v{R0+2*i+1}")
        a(f"v_cvt_pk_bf16_f32 v{100+i}, v{R1+2*i}, v{R1+2*i+1}")
    a("ds_write_b128 v10, v[96:99]")
    a("ds_write_b128 v10, v[100:103] offset:144")
    a("v_and_b32 v11, 63, v0")
    a("v_lshrrev_b32 v12, 4, v11")
    a("v_and_b32 v13, 15, v11")
    a("v_lshrrev_b32 v14, 2, v13")
    a("v_lshlrev_b32 v15, 3, v12")
    a("v_sub_u32 v15, v15, v14")
    a("v_add_u32 v15, 3, v15")
    a("v_mul_u32_u24 v15, 144, v15")
    a("v_and_b32 v14, 3, v13")
    a("v_lshl_add_u32 v15, v14, 3, v15")
    a("s_lshl_b32 s35, s34, 5")
    a("v_add_u32 v15, s35, v15")
    a("s_lshl_b32 s36, s14, 6")
    a("s_lshl_b32 s37, s34, 4")
    a("s_add_u32 s36, s36, s37")
    a("v_add_u32 v14, s36, v13")
    a("v_lshlrev_b32 v14, 12, v14")
    a("v_lshl_add_u32 v14, v12, 4, v14")
    a("s_lshl_b32 s37, s13, 7")
    a("v_add_u32 v14, s37, v14")
    a("s_waitcnt lgkmcnt(0)")
    a("s_barrier")
    a("; mark 3")
    for rho in range(2):
        base = rho * 32 * 144
        a(f"ds_read_b64_tr_b16 {vr(16+4*rho, 2)}, v15 offset:{base + 4*144}")
        a(f"ds_read_b64_tr_b16 {vr(18+4*rho, 2)}, v15 offset:{base}")
    a("s_waitcnt lgkmcnt(2)")
    a(f"buffer_store_dwordx4 v[16:19], v14, s[28:31], 0 offen {OUT_FLAGS}")
    a("s_waitcnt lgkmcnt(0)")
    a(f"buffer_store_dwordx4 v[20:23], v14, s[28:31], 0 offen offset:64 {OUT_FLAGS}")


def gen_mod(a):
    load_ptr(a, 4, "c"); load_ptr(a, 6, "w_mod"); load_ptr(a, 10, "ws")
    a("v_and_b32 v1, 7, v0")
    a("v_lshrrev_b32 v2, 3, v0")
    a("s_waitcnt lgkmcnt(0)")
    a("; mark 0")
    make_srd(a, 16, 4, D * 2)
    make_srd(a, 20, 6, D * 6 * D * 2)
    make_srd(a, 28, 10, 6 * D * 4, add=WS_MOD)
    make_srd(a, 60, 10, FLG_BYTES, add=WS_FLG)
    a("s_cmp_lg_u32 s2, 0")
    a(f"s_cbranch_scc1 {NAME}_noflags")
    a("v_lshlrev_b32 v3, 4, v0")
    for i in range(4):
        a(f"v_mov_b32 v{4+i}, 0")
    a(f"buffer_store_dwordx4 v[4:7], v3, s[60:63], 0 offen {OUT_FLAGS}")
    for i in range(2):
        a("v_add_u32 v3, 0x1000, v3")
        a(f"buffer_store_dwordx4 v[4:7], v3, s[60:63], 0 offen {OUT_FLAGS}")
    a("s_waitcnt vmcnt(0)")
    a(f"{NAME}_noflags:")
    a("v_lshlrev_b32 v3, 1, v0")
    for i in range(3):
        a(f"buffer_load_ushort v{4+i}, v3, s[16:19], 0 offen offset:{512*i}")
    a("v_mul_u32_u24 v7, 6912, v2")
    a("v_lshl_add_u32 v7, v1, 4, v7")
    a("s_lshl_b32 s12, s2, 7")
    W = 16
    for j in range(18):
        a(f"buffer_load_dwordx4 {vr(W+4*j, 4)}, v7, s[20:23], s12 offen {IN_FLAGS}")
        if j < 17:
            a(f"s_add_u32 s12, s12, {32*6912}")
    a("; mark 1")
    a("s_waitcnt vmcnt(18)")
    a("; mark 2")
    a("v_lshlrev_b32 v8, 2, v0")
    for i in range(3):
        a(f"v_lshlrev_b32 v{4+i}, 16, v{4+i}")
        a(f"v_mul_f32 v9, {f32hex(-LOG2E)}, v{4+i}")
        a("v_exp_f32 v9, v9")
        a("s_nop 0")
        a("v_add_f32 v9, 1.0, v9")
        a("v_rcp_f32 v9, v9")
        a("s_nop 0")
        a(f"v_mul_f32 v9, v{4+i}, v9")
        a("v_cvt_pk_bf16_f32 v9, v9, v9")
        a("v_lshlrev_b32 v9, 16, v9")
        a(f"ds_write_b32 v8, v9 offset:{1024*i}")
    a("s_waitcnt lgkmcnt(0)")
    a("s_barrier")
    a("v_lshlrev_b32 v8, 2, v2")
    SV = 88
    for j in range(18):
        a(f"ds_read_b32 v{SV+j}, v8 offset:{128*j}")
    ACC, T = 108, 116
    for e in range(8):
        a(f"v_mov_b32 v{ACC+e}, 0")
    a("s_waitcnt lgkmcnt(0)")
    for j in range(18):
        a(f"s_waitcnt vmcnt({17-j})")
        for i in range(4):
            unpack_lo(a, T, W + 4*j + i); unpack_hi(a, T + 1, W + 4*j + i)
            a(f"v_fmac_f32 v{ACC+2*i}, v{T}, v{SV+j}")
            a(f"v_fmac_f32 v{ACC+2*i+1}, v{T+1}, v{SV+j}")
    a("; mark 3")
    a("v_lshlrev_b32 v9, 8, v2")
    a("v_lshl_add_u32 v9, v1, 5, v9")
    a(f"ds_write_b128 v9, {vr(ACC, 4)} offset:3072")
    a(f"ds_write_b128 v9, {vr(ACC+4, 4)} offset:3088")
    a("s_waitcnt lgkmcnt(0)")
    a("s_barrier")
    a("v_cmp_gt_u32 vcc, 64, v0")
    a("s_and_saveexec_b64 s[40:41], vcc")
    a(f"s_cbranch_execz {NAME}_done")
    a("v_lshlrev_b32 v9, 2, v0")
    for r in range(32):
        a(f"ds_read_b32 v{16+r}, v9 offset:{3072 + 256*r}")
    a("s_waitcnt lgkmcnt(0)")
    n = 32
    while n > 1:
        n //= 2
        for r in range(n):
            a(f"v_add_f32 v{16+r}, v{16+r}, v{16+r+n}")
    a("v_cvt_pk_bf16_f32 v16, v16, v16")
    a("v_lshlrev_b32 v16, 16, v16")
    m = magic_div(N_MOD, 9)
    a(f"s_mul_i32 s13, s2, {m}")
    a("s_lshr_b32 s13, s13, 16")
    a("s_cmp_eq_u32 s13, 1")
    a("s_cselect_b32 s14, 1, 0")
    a("s_cmp_eq_u32 s13, 4")
    a("s_cselect_b32 s14, 1, s14")
    a("s_cmp_eq_u32 s14, 0")
    a(f"s_cbranch_scc1 {NAME}_mod_store")
    a("v_add_f32 v16, 1.0, v16")
    a("v_cvt_pk_bf16_f32 v16, v16, v16")
    a("v_lshlrev_b32 v16, 16, v16")
    a(f"{NAME}_mod_store:")
    a("s_lshl_b32 s12, s2, 8")
    a(f"buffer_store_dword v16, v9, s[28:31], s12 offen {OUT_FLAGS}")
```

```python
import sys
from common import *
import k_front, k_ffn, k_pre, k_conv, repack

HEADER = open("adaLN_cond__ssm_conv_h3__glu_gated_swiglu__prompt.s.ref").read().split("; Override launch")[0]


TO_DEBUG = False


def with_stamps(text, name, idx):
    a = Asm(); stamp_begin(a)
    b = Asm(); stamp_end(b, name, idx)
    lines = text.split("\n")
    out = []
    seen_guard = False
    for l in lines:
        if l == f"s_cbranch_scc1 {name}_done" and not seen_guard:
            out.append(f"s_cbranch_scc1 {name}_exit"); out += a.lines; seen_guard = True
        elif l.startswith("; mark "):
            out += stamp_mark(int(l.split()[2]))
        elif l == "s_endpgm":
            out += b.lines
            if TO_DEBUG and name == "ffn_kernel":
                c = Asm(); c("s_mov_b64 exec, -1"); stamp_to_debug(c, name); out += c.lines
            out.append(f"{name}_exit:"); out.append(l)
        else:
            out.append(l)
    return "\n".join(out)


THREE = False


def build(path, stamps=False):
    ks = [(k_front, 256, 192, None), (k_ffn, 256, 512, 256)]
    if THREE:
        ks = [(k_pre, 256, 128, None), (k_conv, 256, 192, None), (k_ffn, 256, 512, 256)]
    a = Asm()
    a(HEADER.rstrip("\n"))
    for k, block, _, _ in ks:
        a(f"; @launch kernel={k.NAME} grid=({k.GRID},1,1) block=({block},1,1) lds={getattr(k, 'LDS', 0)}")
    a('.amdgcn_target "amdgcn-amd-amdhsa--gfx950"')
    for i, (k, *_) in enumerate(ks):
        t = k.gen().text()
        a(with_stamps(t, k.NAME, i) if stamps else t)
    for k, _, vg, acc in ks:
        kernel_desc(a, k.NAME, vg, acc)
    open(path, "w").write(a.text())


if __name__ == "__main__":
    import common
    build("full.s")
    sets = {"a": ["loads", "flag1", "p1", "p1end", "p2end", "end"],
            "b": ["loads", "mixdone", "flag1", "got1", "p1", "c0"],
            "c": ["p1end", "p2", "p2end", "drained", "got2", "issued"]}
    for k, names in sets.items():
        k_ffn.MARKS = {n: i for i, n in enumerate(names)}
        for instr, tag in (("s_memrealtime", "st"), ("s_memtime", "cy")):
            common.MARK_INSTR = instr
            build(f"full_{k}_{tag}.s", stamps=True)
    k_ffn.MARKS = {n: i for i, n in enumerate(sets["a"])}
    common.MARK_INSTR = "s_memrealtime"
    for d in sys.argv[1:]:
        if d == "dbg":
            TO_DEBUG = True
            build("var_dbg.s", stamps=True)
            TO_DEBUG = False
            continue
        if d == "dbg3":
            TO_DEBUG = True; THREE = True
            build("var_dbg3.s", stamps=True)
            TO_DEBUG = False; THREE = False
            continue
        if d == "three":
            THREE = True
            build("var_three.s"); build("var_three_st.s", stamps=True)
            THREE = False
            continue
        if d == "nont":
            k_front.IN_FLAGS = ""; repack.LOAD_FLAGS = ""; k_ffn.NT = ""
            build("var_nont.s"); build("var_nont_st.s", stamps=True)
            k_front.IN_FLAGS = "nt"; repack.LOAD_FLAGS = "nt"; k_ffn.NT = "nt"
            continue
        if d == "nogate":
            k_front.GATE = False
            build(f"var_{d}_st.s", stamps=True)
            k_front.GATE = True
            continue
        if d.startswith("ps_"):
            old = k_ffn.STORE_FLAGS
            k_ffn.STORE_FLAGS = {"p": "", "nt": "nt", "sc1": "sc1", "s01": "sc0 sc1", "s1n": "sc1 nt"}[d[3:]]
            build(f"var_{d}_st.s", stamps=True)
            k_ffn.STORE_FLAGS = old
            continue
        k_ffn.DIAG = set(d.split("+"))
        k_ffn.MARKS = {n: i for i, n in enumerate(sets["c"])}
        for instr, tag in (("s_memrealtime", "st"), ("s_memtime", "cy")):
            common.MARK_INSTR = instr
            build(f"diag_{d}_{tag}.s", stamps=True)
        k_ffn.DIAG = set()
```
